```python
import torch

def _softmax(x, axis=-1):
    return torch.softmax(x, dim=axis)
def _gelu(x):
    return torch.nn.functional.gelu(x, approximate="tanh")
def _silu(x):
    return torch.nn.functional.silu(x)
def _sigmoid(x):
    return torch.sigmoid(x)
def _layernorm(x, axis=-1, eps=1e-5):
    m = x.mean(dim=axis, keepdim=True)
    v = x.var(dim=axis, keepdim=True, unbiased=False)
    return (x - m) / torch.sqrt(v + eps)
def _scatter_add(tgt, idx, src, axis=0):
    return tgt.clone().index_add_(axis, idx, src)
def _segment_sum(src, seg, n):
    out = torch.zeros((n,) + src.shape[1:], dtype=src.dtype)
    return out.index_add_(0, seg, src)
def _pad(x, pw):
    flat = tuple(v for pair in reversed(pw) for v in pair)
    return torch.nn.functional.pad(x, flat)

kernel_name = 'interleave_layers__sliding_block__dense_activation_squared_relu__prompt'

def setup_inputs():

    _w = (lambda a: (lambda t: t.to(torch.bfloat16) if t.is_floating_point() else t)(torch.as_tensor(a)))
    def _A_setup():
        B, S, D = 1, 2048, 640
        return {
            "x": _w((lambda *s: torch.randn(*s, dtype=torch.bfloat16) * 0.05)(B, S, D)),
            "wqkv": _w((lambda *s: torch.randn(*s, dtype=torch.bfloat16) * 0.05)(D, 3 * D)),
            "wo": _w((lambda *s: torch.randn(*s, dtype=torch.bfloat16) * 0.05)(D, D)),
        }
    _A_in = _A_setup()

    def _B_setup():
        B, S, D, F = 1, 2048, 640, 1536
        return {
            "x": _w((lambda *s: torch.randn(*s, dtype=torch.bfloat16) * 0.05)(B, S, D)),
            "w1": _w((lambda *s: torch.randn(*s, dtype=torch.bfloat16) * 0.05)(D, F)),
            "b1": _w((lambda *s: torch.randn(*s, dtype=torch.bfloat16) * 0.2)(F)),
            "w2": _w((lambda *s: torch.randn(*s, dtype=torch.bfloat16) * 0.05)(F, D)),
            "b2": _w((lambda *s: torch.randn(*s, dtype=torch.bfloat16) * 0.8)(D)),
        }
    _B_in = _B_setup()

    return {
        "A_x": _A_in["x"],
        "A_wqkv": _A_in["wqkv"],
        "A_wo": _A_in["wo"],
        "B_x": _B_in["x"],
        "B_w1": _B_in["w1"],
        "B_b1": _B_in["b1"],
        "B_w2": _B_in["w2"],
        "B_b2": _B_in["b2"],
    }

def reference(A_x, A_wqkv, A_wo, B_x, B_w1, B_b1, B_w2, B_b2):
    def _A_ref(x, wqkv, wo):
        B, S, D = x.shape
        H = 32; Dh = D // H; W = 256
        qkv = (lambda x, *d: x.permute(*d))((x @ wqkv).reshape(B, S, 3, H, Dh), 2, 0, 3, 1, 4)
        q, k, v = qkv[0], qkv[1], qkv[2]
        scores = torch.einsum("bhqd,bhkd->bhqk", q, k) * (Dh ** -0.5)
        idx = torch.arange(S)
        mask = (idx[:, None] - idx[None, :] >= 0) & (idx[:, None] - idx[None, :] < W)
        scores = torch.where(mask[None, None], scores, -1e9)
        p = _softmax(scores, axis=-1)
        o = torch.einsum("bhqk,bhkd->bhqd", p, v)
        return (lambda x, *d: x.permute(*d))(o, 0, 2, 1, 3).reshape(B, S, D) @ wo

    def _B_ref(x, w1, b1, w2, b2):
        h = torch.einsum("bsd,df->bsf", x, w1) + b1
        zero = torch.zeros_like(h)
        r = torch.where(h > zero, h, zero)
        h = r * r
        out = torch.einsum("bsf,fd->bsd", h, w2) + b2
        return out

    x = A_x
    x = x + _A_ref(_layernorm(x, axis=-1), A_wqkv, A_wo)
    x = x + _B_ref(_layernorm(x, axis=-1), B_w1, B_b1, B_w2, B_b2)
    x = x + _A_ref(_layernorm(x, axis=-1), A_wqkv, A_wo)
    x = x + _B_ref(_layernorm(x, axis=-1), B_w1, B_b1, B_w2, B_b2)
    return x
```

```python
class K:
    def __init__(self, name):
        self.name = name
        self.lines = []
        self.vm = []
        self.maxv = 0
        self.maxs = 0
        self.nlabel = 0
    def e(self, s):
        self.lines.append("    " + s)
    def c(self, s):
        self.lines.append("    ; " + s)
    def label(self, l):
        self.lines.append(l + ":")
    def newlabel(self, base="L"):
        self.nlabel += 1
        return f"{base}_{self.name}_{self.nlabel}"
    def vmem(self, s, tag):
        self.e(s)
        self.vm.append(tag)
    def wait_vm(self, tag, extra=""):
        tags = tag if isinstance(tag, (set, list)) else [tag]
        last = -1
        for i, t in enumerate(self.vm):
            if t in tags:
                last = i
        assert last >= 0, f"no vmem op with tag {tag}"
        n = len(self.vm) - 1 - last
        n = min(n, 63)
        self.e(f"s_waitcnt vmcnt({n}){extra}")
    def text(self):
        return "\n".join(self.lines) + "\n"

def vr(a, n=1):
    return f"v{a}" if n == 1 else f"v[{a}:{a+n-1}]"
def sr(a, n=1):
    return f"s{a}" if n == 1 else f"s[{a}:{a+n-1}]"

def kernel_header(name):
    return f".globl {name}\n.p2align 8\n.type {name},@function\n{name}:\n"

def descriptor(name, nv, ns=96):
    acc = (nv + 3) // 4 * 4
    return f""".p2align 6
.amdhsa_kernel {name}
  .amdhsa_next_free_vgpr {nv}
  .amdhsa_next_free_sgpr {ns}
  .amdhsa_accum_offset {acc}
  .amdhsa_group_segment_fixed_size 0
  .amdhsa_kernarg_size 88
  .amdhsa_user_sgpr_count 2
  .amdhsa_user_sgpr_kernarg_segment_ptr 1
  .amdhsa_system_sgpr_workgroup_id_x 1
.end_amdhsa_kernel
"""
```

```python
import sys, math
from asmlib import *

NAME = "interleave_layers__sliding_block__dense_activation_squared_relu__prompt"
S_, D_, F_ = 2048, 640, 1536
WS_X   = 0
WS_QKV = 0x280000
WS_O   = 0xA00000
WS_H   = 0xC80000
WS_ST  = 0x1280000
WS_AUGQ = 0x12C0000
WS_AUG1 = 0x12D8000
WS_END = 0x12F0000
KA_X, KA_WQKV, KA_WO, KA_W1, KA_B1, KA_W2, KA_B2, KA_OUT, KA_DBG, KA_WS = 0, 8, 16, 32, 40, 48, 56, 64, 72, 80

def srd(k, d, lo, nbytes):
    k.e(f"s_mov_b32 s{d}, s{lo}")
    k.e(f"s_mov_b32 s{d+1}, s{lo+1}")
    k.e(f"s_mov_b32 s{d+2}, {nbytes}")
    k.e(f"s_mov_b32 s{d+3}, 0x00020000")

def f32bits(x):
    import struct
    return struct.unpack("<I", struct.pack("<f", x))[0]

def gen_prep(code_bytes):
    k = K("prep")
    e = k.e
    e("s_load_dwordx4 s[4:7], s[0:1], 0")
    e("s_load_dwordx2 s[8:9], s[0:1], 16")
    e("s_load_dwordx4 s[12:15], s[0:1], 32")
    e("s_load_dwordx2 s[10:11], s[0:1], 48")
    e("s_load_dwordx2 s[16:17], s[0:1], 80")
    e("s_cmp_ge_u32 s2, 236")
    e("s_cbranch_scc1 L_prep_end")
    e("v_lshrrev_b32 v1, 6, v0")
    e("v_and_b32 v2, 63, v0")
    e("v_readfirstlane_b32 s18, v1")
    e("v_lshlrev_b32 v3, 7, v0")
    e("s_waitcnt lgkmcnt(0)")
    srd(k, 20, 16, WS_END)
    e("s_cmp_ge_u32 s2, 85")
    e("s_cbranch_scc1 L_prep_notouch")
    e("s_cmp_lt_u32 s2, 25")
    e("s_cselect_b32 s24, s8, s10")
    e("s_cselect_b32 s25, s9, s11")
    e(f"s_mov_b32 s26, {F_*D_*2}")
    e("s_mov_b32 s27, 0x00020000")
    e("s_cselect_b32 s28, 0, 25")
    e("s_sub_u32 s28, s2, s28")
    e("s_lshl_b32 s28, s28, 15")
    e("buffer_load_dword v40, v3, s[24:27], s28 offen")
    k.label("L_prep_notouch")
    e("s_lshr_b32 s28, s2, 3")
    e("s_cmp_lg_u32 s28, 12")
    e("s_cbranch_scc1 L_prep_nocode")
    e("s_getpc_b64 s[24:25]")
    k.label("L_prep_pc")
    e("s_add_u32 s24, s24, L_code_begin-L_prep_pc")
    e("s_addc_u32 s25, s25, 0")
    e(f"s_mov_b32 s26, L_code_end-L_code_begin")
    e("s_mov_b32 s27, 0x00020000")
    e("buffer_load_dword v41, v3, s[24:27], 0 offen")
    e("s_mov_b32 s28, 32768")
    e("buffer_load_dword v42, v3, s[24:27], s28 offen")
    k.label("L_prep_nocode")
    e("s_cmp_ge_u32 s2, 128")
    e("s_cbranch_scc1 L_prep_cs")
    srd(k, 24, 4, S_*D_*2)
    e("s_and_b32 s28, s2, 7")
    e("s_lshr_b32 s29, s2, 3")
    e("s_lshl_b32 s30, s28, 3")
    e("s_lshr_b32 s31, s29, 1")
    e("s_add_u32 s30, s30, s31")
    e("s_and_b32 s31, s29, 1")
    e("s_lshl_b32 s32, s31, 2")
    e("s_add_u32 s32, s32, s18")
    e("s_mul_i32 s33, s32, 10")
    e("s_mul_i32 s34, s30, 40960")
    e("s_lshl_b32 s35, s33, 4")
    e("s_add_u32 s35, s35, s34")
    e("s_lshl_b32 s36, s33, 9")
    e("s_add_u32 s36, s36, s34")
    e("s_add_u32 s37, s36, 4096")
    e("v_and_b32 v4, 31, v2")
    e("v_lshrrev_b32 v5, 5, v2")
    e("v_mul_u32_u24 v6, 1280, v4")
    e("v_lshl_add_u32 v6, v5, 4, v6")
    e("v_lshlrev_b32 v7, 4, v2")
    for t in range(5):
        e(f"buffer_load_dwordx4 v[{8+4*t}:{11+4*t}], v6, s[24:27], s35 offen offset:{32*t}")
    e("v_mov_b32 v30, 0")
    e("v_mov_b32 v31, 0")
    for t in range(5):
        e(f"s_waitcnt vmcnt({4 if t==0 else 4})")
        if t < 4:
            e(f"buffer_store_dwordx4 v[{8+4*t}:{11+4*t}], v7, s[20:23], s36 offen offset:{1024*t}")
        else:
            e(f"buffer_store_dwordx4 v[{8+4*t}:{11+4*t}], v7, s[20:23], s37 offen")
        for q in range(4):
            r = 8 + 4*t + q
            e(f"v_lshlrev_b32 v32, 16, v{r}")
            e(f"v_and_b32 v33, 0xffff0000, v{r}")
            e("v_add_f32 v30, v30, v32")
            e("v_fmac_f32 v31, v32, v32")
            e("v_add_f32 v30, v30, v33")
            e("v_fmac_f32 v31, v33, v33")
    e("v_lshlrev_b32 v34, 4, v4")
    e("v_lshl_add_u32 v34, v5, 3, v34")
    e("s_lshl_b32 s38, s30, 12")
    e("s_lshl_b32 s39, s32, 9")
    e("s_add_u32 s38, s38, s39")
    e(f"s_add_u32 s38, s38, {WS_ST}")
    e("buffer_store_dwordx2 v[30:31], v34, s[20:23], s38 offen")
    e("s_endpgm")
    k.label("L_prep_cs")
    e("s_sub_u32 s28, s2, 128")
    e("s_cmp_lt_u32 s28, 60")
    e("s_cselect_b32 s24, s6, s12")
    e("s_cselect_b32 s25, s7, s13")
    e(f"s_mov_b32 s26, {D_*F_*2}")
    e(f"s_cselect_b32 s26, {D_*3*D_*2}, s26")
    e("s_mov_b32 s27, 0x00020000")
    e("s_mov_b32 s29, 3072")
    e("s_cselect_b32 s29, 3840, s29")
    e("s_cselect_b32 s30, 0, 60")
    e(f"s_mov_b32 s31, {WS_AUG1}")
    e(f"s_cselect_b32 s31, {WS_AUGQ}, s31")
    e("s_cselect_b32 s42, 0, 3072")
    e("s_sub_u32 s28, s28, s30")
    e("s_lshl_b32 s28, s28, 6")
    e("s_mov_b32 s40, s14")
    e("s_mov_b32 s41, s15")
    e("s_mov_b32 s43, 0x00020000")
    e("v_lshrrev_b32 v4, 2, v2")
    e("v_and_b32 v5, 3, v2")
    e("v_mul_lo_u32 v6, v4, s29")
    e("v_lshl_add_u32 v6, v5, 4, v6")
    e("s_mul_i32 s32, s18, 160")
    e("s_mul_i32 s32, s32, s29")
    e("s_add_u32 s32, s32, s28")
    e("s_lshl_b32 s33, s29, 4")
    for t in range(10):
        e(f"buffer_load_dwordx4 v[{44+4*t}:{47+4*t}], v6, s[24:27], s32 offen")
        if t < 9:
            e("s_add_u32 s32, s32, s33")
    e("v_and_b32 v7, 31, v0")
    e("v_lshlrev_b32 v8, 1, v7")
    e("buffer_load_ushort v9, v8, s[40:43], s28 offen")
    for q in range(8):
        e(f"v_mov_b32 v{16+q}, 0")
    for t in range(10):
        e(f"s_waitcnt vmcnt({10-t})")
        for q in range(4):
            r = 44 + 4*t + q
            e(f"v_lshlrev_b32 v32, 16, v{r}")
            e(f"v_and_b32 v33, 0xffff0000, v{r}")
            e(f"v_add_f32 v{16+2*q}, v{16+2*q}, v32")
            e(f"v_add_f32 v{17+2*q}, v{17+2*q}, v33")
    e("v_lshlrev_b32 v10, 5, v0")
    e("ds_write_b128 v10, v[16:19]")
    e("ds_write_b128 v10, v[20:23] offset:16")
    e("v_lshrrev_b32 v11, 5, v0")
    e("v_lshlrev_b32 v12, 10, v11")
    e("v_lshl_add_u32 v12, v7, 2, v12")
    e("s_waitcnt lgkmcnt(0)")
    e("s_barrier")
    for i in range(8):
        e(f"ds_read_b32 v{16+i}, v12 offset:{128*i}")
    e("s_waitcnt lgkmcnt(0)")
    for i in range(1, 8):
        e(f"v_add_f32 v16, v16, v{16+i}")
    e("v_lshlrev_b32 v13, 2, v0")
    e("ds_write_b32 v13, v16 offset:8192")
    e("v_lshlrev_b32 v13, 2, v7")
    e("s_waitcnt lgkmcnt(0)")
    e("s_barrier")
    for i in range(8):
        e(f"ds_read_b32 v{16+i}, v13 offset:{8192+128*i}")
    e("s_waitcnt lgkmcnt(0)")
    for i in range(1, 8):
        e(f"v_add_f32 v16, v16, v{16+i}")
    e("v_cvt_pk_bf16_f32 v17, v16, v16")
    e("v_and_b32 v18, 0xffff0000, v17")
    e("v_sub_f32 v18, v16, v18")
    e("v_cvt_pk_bf16_f32 v18, v18, v18")
    e("s_waitcnt vmcnt(0)")
    e("v_mov_b32 v19, 0")
    e("v_cmp_gt_u32 vcc, 5, v11")
    e("s_nop 1")
    e("v_cndmask_b32 v19, v19, v9, vcc")
    e("v_cmp_gt_u32 vcc, 3, v11")
    e("s_nop 1")
    e("v_cndmask_b32 v19, v19, v17, vcc")
    e("v_cmp_eq_u32 vcc, 1, v11")
    e("s_nop 1")
    e("v_cndmask_b32 v19, v19, v18, vcc")
    e("v_mul_lo_u32 v20, v11, s29")
    e("v_add_u32 v20, v20, v8")
    e("s_add_u32 s31, s31, s28")
    e("v_mov_b32 v21, 0")
    e("buffer_store_short v19, v20, s[20:23], s31 offen")
    e("s_lshl_b32 s33, s29, 3")
    e("s_add_u32 s31, s31, s33")
    e("buffer_store_short v21, v20, s[20:23], s31 offen")
    e("s_add_u32 s31, s31, s33")
    e("buffer_store_short v21, v20, s[20:23], s31 offen")
    k.label("L_prep_end")
    e("s_endpgm")
    return k, 96

def emit_tr_lane(k, vl, vt0, vt1, vdst, hf_stride, r_stride, ch_stride):
    e = k.e
    e(f"v_lshrrev_b32 {vt0}, 5, {vl}")
    e(f"v_mul_u32_u24 {vdst}, {hf_stride}, {vt0}")
    e(f"v_bfe_u32 {vt0}, {vl}, 2, 2")
    e(f"v_mul_u32_u24 {vt0}, {r_stride}, {vt0}")
    e(f"v_add_u32 {vdst}, {vdst}, {vt0}")
    if ch_stride:
        e(f"v_bfe_u32 {vt0}, {vl}, 4, 1")
        e(f"v_mul_u32_u24 {vt0}, {ch_stride}, {vt0}")
        e(f"v_add_u32 {vdst}, {vdst}, {vt0}")
    e(f"v_and_b32 {vt0}, 1, {vl}")
    e(f"v_lshl_add_u32 {vdst}, {vt0}, 4, {vdst}")
    e(f"v_bfe_u32 {vt0}, {vl}, 1, 1")
    e(f"v_lshl_add_u32 {vdst}, {vt0}, 3, {vdst}")

def gen_gemm1(name, NT, N, ka_w, out_base, aug_base, relu2, DCH=2):
    k = K(name)
    e = k.e
    RS = N * 2
    KQS = NT * 256
    STEP = 4 * KQS
    NJ = N // (32 * NT)
    OPB = N // 8
    KS = 40
    NCH = 10
    end = f"L_{name}_end"
    e(f"s_load_dwordx2 s[4:5], s[0:1], {ka_w}")
    e(f"s_load_dwordx2 s[6:7], s[0:1], {KA_WS}")
    e("s_cmp_ge_u32 s2, 256")
    e(f"s_cbranch_scc1 {end}")
    e("s_and_b32 s22, s2, 7")
    e("s_lshr_b32 s23, s2, 3")
    e("s_and_b32 s17, s23, 15")
    if NJ < 16:
        e(f"s_cmp_ge_u32 s17, {NJ}")
        e(f"s_cbranch_scc1 {end}")
    e("s_lshl_b32 s16, s22, 1")
    e("s_lshr_b32 s23, s23, 4")
    e("s_add_u32 s16, s16, s23")
    e("v_lshrrev_b32 v10, 6, v0")
    e("v_and_b32 v1, 63, v0")
    e("v_readfirstlane_b32 s18, v10")
    e("v_lshlrev_b32 v2, 4, v1")
    per = NT * 16
    for t in range(NT):
        if NT == 4:
            if t == 0:
                e("v_lshrrev_b32 v10, 4, v1")
                e("v_lshlrev_b32 v3, 6, v10")
                e("v_bfe_u32 v10, v1, 2, 2")
                e(f"v_mul_u32_u24 v10, {RS}, v10")
                e("v_and_b32 v11, 3, v1")
                e("v_lshlrev_b32 v11, 4, v11")
                e("v_add3_u32 v3, v3, v10, v11")
            else:
                e(f"v_add_u32 v{3+t}, {t*(4*RS-1024)}, v3")
        else:
            e(f"v_add_u32 v10, {64*t}, v1")
            e("v_mul_u32_u24 v11, 1366, v10")
            e("v_lshrrev_b32 v11, 16, v11")
            e("v_mul_u32_u24 v12, 48, v11")
            e("v_sub_u32 v10, v10, v12")
            e("v_bfe_u32 v12, v10, 2, 2")
            e("v_lshl_add_u32 v11, v11, 2, v12")
            e(f"v_mul_u32_u24 v11, {RS}, v11")
            e("v_lshrrev_b32 v12, 4, v10")
            e("v_lshlrev_b32 v12, 6, v12")
            e("v_and_b32 v10, 3, v10")
            e("v_lshlrev_b32 v10, 4, v10")
            e(f"v_add3_u32 v{3+t}, v11, v12, v10")
            if t:
                e(f"v_subrev_u32 v{3+t}, {1024*t}, v{3+t}")
    emit_tr_lane(k, "v1", "v10", "v11", "v7", 2*KQS, 64, 32)
    SPB = 65536 // STEP
    e(f"v_add_u32 v8, {SPB*STEP}, v7")
    e(f"v_add_u32 v9, {2*SPB*STEP}, v7")
    e("s_lshl_b32 s24, s16, 2")
    e("s_add_u32 s24, s24, s18")
    e("s_mul_i32 s19, s24, 40960")
    e(f"s_mul_i32 s20, s18, {16*RS}")
    e(f"s_mul_i32 s25, s17, {NT*64}")
    e("s_add_u32 s20, s20, s25")
    e(f"s_mul_i32 s21, s18, {STEP}")
    e("s_lshl_b32 s26, s24, 12")
    e(f"s_add_u32 s26, s26, {WS_ST}")
    e(f"s_mul_i32 s27, s18, {4*RS}")
    e("s_add_u32 s27, s27, s25")
    e(f"s_add_u32 s27, s27, {aug_base}")
    AUG_LDS = 0 if NT == 4 else KS * STEP
    e(f"s_mul_i32 s28, s18, {KQS}")
    if AUG_LDS:
        e(f"s_add_u32 s28, s28, {AUG_LDS}")
    e(f"s_mul_i32 s29, s24, {OPB*512}")
    e(f"s_mul_i32 s30, s17, {NT*4*512}")
    e("s_add_u32 s29, s29, s30")
    e(f"s_add_u32 s29, s29, {out_base}")
    e("s_add_u32 s30, s29, 4096")
    e("s_waitcnt lgkmcnt(0)")
    srd(k, 8, 4, D_ * N * 2)
    srd(k, 12, 6, WS_END)
    WF = 40; ACC = 72; AR = 136; R = 16; ST = 16; XA = 32; RSD = 36
    def areg(s): return AR + 4 * (s % R)
    def load_ops(c):
        ops = []
        def dma(t):
            def f():
                if t == 0:
                    e("s_mov_b32 m0, s21")
                    e(f"s_add_u32 s21, s21, {4*STEP}")
                k.vmem(f"buffer_load_dwordx4 v{3+t}, s[8:11], s20 offen offset:{1024*t} lds", ("c", c))
                if t == NT - 1:
                    e(f"s_add_u32 s20, s20, {64*RS}")
            return f
        def lda(q):
            def f():
                a = areg(4*c + q)
                k.vmem(f"buffer_load_dwordx4 v[{a}:{a+3}], v2, s[12:15], s19 offen offset:{1024*q}", ("c", c))
                if q == 3:
                    e("s_add_u32 s19, s19, 4096")
            return f
        for t in range(NT): ops.append(dma(t))
        for q in range(4): ops.append(lda(q))
        return ops
    def trread(s, cb, dst):
        if s == KS:
            off0 = AUG_LDS; b = min(off0 // (SPB*STEP), 2); off0 -= b * SPB * STEP
        else:
            b = s // SPB; off0 = (s % SPB) * STEP
        for rho in range(2):
            e(f"ds_read_b64_tr_b16 v[{dst+2*rho}:{dst+2*rho+1}], v{7+b} offset:{off0 + rho*KQS + cb*256}")
    for c in range(DCH):
        for f in load_ops(c): f()
    for t in range(4):
        k.vmem(f"buffer_load_dwordx4 v[{ST+4*t}:{ST+4*t+3}], v2, s[12:15], s26 offen offset:{1024*t}", "st")
    k.wait_vm(("c", 0))
    e("s_barrier")
    for cb in range(NT):
        trread(0, cb, WF + 4*cb)
    sv = []
    a = sv.append
    for t in range(1, 4):
        a(f"v_add_f32 v{ST}, v{ST}, v{ST+4*t}")
        a(f"v_add_f32 v{ST+1}, v{ST+1}, v{ST+4*t+1}")
        a(f"v_add_f32 v{ST+2}, v{ST+2}, v{ST+4*t+2}")
        a(f"v_add_f32 v{ST+3}, v{ST+3}, v{ST+4*t+3}")
    a(f"v_add_f32 v{ST}, v{ST}, v{ST+2}")
    a(f"v_add_f32 v{ST+1}, v{ST+1}, v{ST+3}")
    a(f"v_mov_b32 v{ST+2}, v{ST}")
    a(f"v_mov_b32 v{ST+3}, v{ST+1}")
    a("s_nop 1")
    a(f"v_permlane32_swap_b32 v{ST}, v{ST+2}")
    a(f"v_permlane32_swap_b32 v{ST+1}, v{ST+3}")
    a("s_nop 1")
    a(f"v_add_f32 v{ST}, v{ST}, v{ST+2}")
    a(f"v_add_f32 v{ST+1}, v{ST+1}, v{ST+3}")
    a(f"v_mul_f32 v{ST}, {f32bits(-1.0/640):#x}, v{ST}")
    a(f"v_mul_f32 v{ST+1}, {f32bits(1.0/640):#x}, v{ST+1}")
    a(f"v_fma_f32 v{ST+1}, -v{ST}, v{ST}, v{ST+1}")
    a(f"v_max_f32 v{ST+1}, 0, v{ST+1}")
    a(f"v_add_f32 v{ST+1}, {f32bits(1e-5):#x}, v{ST+1}")
    a(f"v_rsq_f32 v{RSD}, v{ST+1}")
    a(f"v_cvt_pk_bf16_f32 v{XA}, v{ST}, v{ST}")
    a(f"v_mul_f32 v{ST+1}, v{ST+1}, v{RSD}")
    a(f"v_mov_b32 v{RSD+1}, v{RSD}")
    a(f"v_and_b32 v{ST+2}, 0xffff0000, v{XA}")
    a(f"v_sub_f32 v{ST+2}, v{ST}, v{ST+2}")
    a(f"v_cvt_pk_bf16_f32 v{XA+1}, v{ST+2}, v{ST+1}")
    a(f"v_and_b32 v{ST+3}, 0xffff0000, v{XA+1}")
    a(f"v_sub_f32 v{ST+3}, v{ST+1}, v{ST+3}")
    a(f"v_mov_b32 v{XA+3}, 0")
    a(f"v_cvt_pk_bf16_f32 v{XA+2}, v{ST+3}, v{XA+3}")
    pend = []
    for s in range(KS + 1):
        c, q = divmod(s, 4)
        if q == 0 and c + DCH < NCH:
            pend = load_ops(c + DCH)
        if s == 12:
            pend = pend + [lambda: (e("s_mov_b32 m0, s28"), e("s_nop 0"),
                                    k.vmem("buffer_load_dwordx4 v3, s[12:15], s27 offen lds", "aug"))]
        if s == 16:
            k.wait_vm("st")
        cur = WF + 16 * (s % 2); nxt = WF + 16 * ((s + 1) % 2)
        xs = f"v[{areg(s)}:{areg(s)+3}]" if s < KS else f"v[{XA}:{XA+3}]"
        for cb in range(NT):
            last = (s == KS)
            n_out = 2 * (NT - 1) if not last else 2 * (NT - 1 - cb)
            e(f"s_waitcnt lgkmcnt({n_out})")
            acc = ACC + 16 * cb
            csrc = "0" if s == 0 else f"v[{acc}:{acc+15}]"
            e(f"v_mfma_f32_32x32x16_bf16 v[{acc}:{acc+15}], v[{cur+4*cb}:{cur+4*cb+3}], {xs}, {csrc}")
            if cb == 0 and not last and (s + 1) % 4 == 0:
                if s + 1 < KS:
                    tags = [("c", (s + 1) // 4)]
                    if s + 1 == 20: tags.append("aug")
                    k.wait_vm(tags)
                    e("s_barrier")
            if not last:
                trread(s + 1, cb, nxt + 4*cb)
            if cb in (1, 2) or (cb == 0 and False):
                quota = 1
                if q == 3 and cb == 2: quota = 99
                while pend and quota > 0:
                    pend.pop(0)(); quota -= 1
            if s >= 16 and sv:
                for _ in range(2):
                    if sv: e(sv.pop(0))
    assert not sv and not pend
    e("s_nop 7")
    e("s_nop 7")
    O = WF
    for cb in range(NT):
        for G in range(2):
            a0 = ACC + 16*cb + 8*G
            o = O + 4 * ((2*cb + G) % 8)
            if relu2:
                for j in range(8):
                    e(f"v_max_f32 v{a0+j}, 0, v{a0+j}")
            for j in range(0, 8, 2):
                e(f"v_pk_mul_f32 v[{a0+j}:{a0+j+1}], v[{a0+j}:{a0+j+1}], v[{RSD}:{RSD+1}]")
            if relu2:
                for j in range(0, 8, 2):
                    e(f"v_pk_mul_f32 v[{a0+j}:{a0+j+1}], v[{a0+j}:{a0+j+1}], v[{a0+j}:{a0+j+1}]")
            for j in range(0, 8, 2):
                e(f"v_cvt_pk_bf16_f32 v{o+j//2}, v{a0+j}, v{a0+j+1}")
            off = (cb*4 + 2*G) * 512
            so = "s29" if off < 4096 else "s30"
            e(f"buffer_store_dwordx4 v[{o}:{o+3}], v2, s[12:15], {so} offen offset:{off % 4096}")
    k.label(end)
    e("s_endpgm")
    lds = KS * STEP + (0 if NT == 4 else STEP + 256)
    return k, AR + 4*R, lds

def gen_gemm2(name, Kd, a_base, ka_w, bias, final, DCH=2):
    k = K(name)
    e = k.e
    RS = 1280
    KS = Kd // 32
    NCH = KS // 4
    RING = min(NCH, 6)
    CHB = 10240
    HALF = RING * CHB
    XCH = 2 * HALF
    end = f"L_{name}_end"
    e(f"s_load_dwordx2 s[4:5], s[0:1], {ka_w}")
    e(f"s_load_dwordx2 s[6:7], s[0:1], {KA_WS}")
    e(f"s_load_dwordx4 s[32:35], s[0:1], {KA_B2}")
    e("s_cmp_ge_u32 s2, 256")
    e(f"s_cbranch_scc1 {end}")
    e("s_and_b32 s22, s2, 7")
    e("s_lshr_b32 s23, s2, 3")
    e("s_and_b32 s17, s23, 7")
    e("s_lshl_b32 s16, s22, 2")
    e("s_lshr_b32 s23, s23, 3")
    e("s_add_u32 s16, s16, s23")
    e("v_lshrrev_b32 v10, 6, v0")
    e("v_and_b32 v1, 63, v0")
    e("v_readfirstlane_b32 s18, v10")
    e("v_lshlrev_b32 v2, 4, v1")
    e("v_lshrrev_b32 v10, 5, v1")
    e("v_bfe_u32 v11, v1, 2, 2")
    e("v_lshl_add_u32 v10, v10, 2, v11")
    e(f"v_mul_u32_u24 v3, {RS}, v10")
    e("v_bfe_u32 v10, v1, 4, 1")
    e("v_lshlrev_b32 v10, 6, v10")
    e("v_and_b32 v11, 3, v1")
    e("v_lshlrev_b32 v11, 4, v11")
    e("v_add3_u32 v3, v3, v10, v11")
    for t in range(1, 4):
        e(f"v_add_u32 v{3+t}, {t*(8*RS-1024)}, v3")
    e("v_lshrrev_b32 v10, 1, v1")
    e(f"v_mul_u32_u24 v7, {RS}, v10")
    e("v_and_b32 v10, 1, v1")
    e("v_lshl_add_u32 v7, v10, 4, v7")
    e("v_add_u32 v7, 128, v7")
    e("s_and_b32 s44, s18, 1")
    e("s_lshr_b32 s45, s18, 1")
    emit_tr_lane(k, "v1", "v10", "v11", "v8", 2*512, 64, 32)
    emit_tr_lane(k, "v1", "v10", "v11", "v9", 2*128, 32, 0)
    e(f"s_mul_i32 s46, s45, {HALF}")
    e("v_add_u32 v8, s46, v8")
    e("v_add_u32 v9, s46, v9")
    e("v_add_u32 v9, 4096, v9")
    e("s_lshl_b32 s24, s16, 1")
    e("s_add_u32 s24, s24, s44")
    e(f"s_mul_i32 s19, s24, {Kd*64}")
    e(f"s_mul_i32 s25, s45, {KS*1024}")
    e("s_add_u32 s19, s19, s25")
    e(f"s_add_u32 s19, s19, {a_base}")
    e(f"s_mul_i32 s20, s45, {KS*16*RS}")
    e(f"s_mul_i32 s25, s44, {32*RS}")
    e("s_add_u32 s20, s20, s25")
    e("s_mul_i32 s25, s17, 160")
    e("s_add_u32 s20, s20, s25")
    e("s_mul_i32 s21, s44, 5120")
    e("s_add_u32 s21, s21, s46")
    e("s_mul_i32 s26, s24, 40960")
    e("s_mul_i32 s27, s17, 5120")
    e("s_add_u32 s26, s26, s27")
    e("s_add_u32 s28, s26, 4096")
    e("s_lshl_b32 s27, s45, 11")
    e("s_add_u32 s26, s26, s27")
    e("s_waitcnt lgkmcnt(0)")
    srd(k, 8, 4, Kd * D_ * 2)
    srd(k, 12, 6, WS_END)
    srd(k, 36, 32, D_ * 2)
    srd(k, 40, 34, S_ * D_ * 2)
    WF = 40; ACC = 64; AR = 112; R = 16; XR = 16; BR = 28
    def areg(s): return AR + 4 * (s % R)
    def load_ops(c):
        ops = []
        slot = (c % RING) * CHB
        def dma(t):
            def f():
                if t == 0:
                    e(f"s_add_u32 m0, s21, {slot}")
                    e("s_nop 0")
                if t == 4:
                    e(f"s_add_u32 m0, s21, {slot + 4096}")
                    e("s_nop 0")
                    k.vmem(f"buffer_load_dwordx4 v7, s[8:11], s20 offen lds", ("c", c))
                    e(f"s_add_u32 s20, s20, {64*RS}")
                else:
                    k.vmem(f"buffer_load_dwordx4 v{3+t}, s[8:11], s20 offen offset:{1024*t} lds", ("c", c))
            return f
        def lda(q):
            def f():
                a = areg(4*c + q)
                k.vmem(f"buffer_load_dwordx4 v[{a}:{a+3}], v2, s[12:15], s19 offen offset:{1024*q}", ("c", c))
                if q == 3:
                    e("s_add_u32 s19, s19, 4096")
            return f
        for t in range(5): ops.append(dma(t))
        for q in range(4): ops.append(lda(q))
        return ops
    def trread(s, cb, dst):
        c, q = divmod(s, 4)
        gb = (c % RING) * CHB + (q >> 1) * 5120
        s2 = q & 1
        for rho in range(2):
            if cb < 2:
                e(f"ds_read_b64_tr_b16 v[{dst+2*rho}:{dst+2*rho+1}], v8 offset:{gb + (4*s2+rho)*512 + cb*256}")
            else:
                e(f"ds_read_b64_tr_b16 v[{dst+2*rho}:{dst+2*rho+1}], v9 offset:{gb + (4*s2+rho)*128}")
    for c in range(DCH):
        for f in load_ops(c): f()
    k.vmem(f"buffer_load_dwordx4 v[{XR}:{XR+3}], v2, s[12:15], s26 offen", "x")
    k.vmem(f"buffer_load_dwordx4 v[{XR+4}:{XR+7}], v2, s[12:15], s26 offen offset:1024", "x")
    k.vmem(f"buffer_load_dwordx4 v[{XR+8}:{XR+11}], v2, s[12:15], s28 offen", "x")
    e("v_lshrrev_b32 v10, 5, v1")
    e("v_lshlrev_b32 v12, 4, v10")
    e("s_mul_i32 s29, s17, 160")
    e("s_add_u32 s31, s29, 128")
    e("s_lshl_b32 s30, s45, 6")
    e("s_add_u32 s29, s29, s30")
    if bias:
        k.vmem(f"buffer_load_dwordx4 v[{BR}:{BR+3}], v12, s[36:39], s29 offen", "x")
        k.vmem(f"buffer_load_dwordx4 v[{BR+4}:{BR+7}], v12, s[36:39], s29 offen offset:32", "x")
        k.vmem(f"buffer_load_dwordx4 v[{BR+8}:{BR+11}], v12, s[36:39], s31 offen", "x")
    k.wait_vm(("c", 0))
    e("s_barrier")
    NT = 3
    for cb in range(NT):
        trread(0, cb, WF + 4*cb)
    pend = []
    for s in range(KS):
        c, q = divmod(s, 4)
        if q == 0 and c + DCH < NCH:
            pend = load_ops(c + DCH)
        cur = WF + 12 * (s % 2); nxt = WF + 12 * ((s + 1) % 2)
        last = (s == KS - 1)
        for cb in range(NT):
            n_out = 2 * (NT - 1) if not last else 2 * (NT - 1 - cb)
            e(f"s_waitcnt lgkmcnt({n_out})")
            acc = ACC + 16 * cb
            csrc = "0" if s == 0 else f"v[{acc}:{acc+15}]"
            e(f"v_mfma_f32_32x32x16_bf16 v[{acc}:{acc+15}], v[{cur+4*cb}:{cur+4*cb+3}], v[{areg(s)}:{areg(s)+3}], {csrc}")
            if cb == 0 and not last and (s + 1) % 4 == 0:
                k.wait_vm(("c", (s + 1) // 4))
                e("s_barrier")
            if not last:
                trread(s + 1, cb, nxt + 4*cb)
            quota = 1 if cb < 2 else 0
            if q == 0 and cb == 2: quota = 1
            if q == 3 and cb == 2: quota = 99
            while pend and quota > 0:
                pend.pop(0)(); quota -= 1
    assert not pend
    e("s_nop 7")
    e("s_nop 7")
    e("s_mul_i32 s47, s44, 10240")
    e(f"s_add_u32 s47, s47, {XCH}")
    e("v_add_u32 v13, s47, v2")
    T0, T1, T2 = ACC, ACC + 16, ACC + 32
    RX = AR
    lk1 = f"L_{name}_kw1"; lj = f"L_{name}_join"
    e("s_cmp_eq_u32 s45, 1")
    e(f"s_cbranch_scc1 {lk1}")
    for q in range(4):
        e(f"ds_write_b128 v13, v[{T1+4*q}:{T1+4*q+3}] offset:{6144+1024*q}")
    e("s_waitcnt lgkmcnt(0)")
    e("s_barrier")
    for q in range(6):
        e(f"ds_read_b128 v[{RX+4*q}:{RX+4*q+3}], v13 offset:{1024*q}")
    e("s_waitcnt lgkmcnt(0)")
    for j in range(0, 16, 2):
        e(f"v_pk_add_f32 v[{RX+j}:{RX+j+1}], v[{RX+j}:{RX+j+1}], v[{T0+j}:{T0+j+1}]")
    for j in range(0, 8, 2):
        e(f"v_pk_add_f32 v[{RX+16+j}:{RX+16+j+1}], v[{RX+16+j}:{RX+16+j+1}], v[{T2+j}:{T2+j+1}]")
    e(f"s_branch {lj}")
    k.label(lk1)
    for q in range(4):
        e(f"ds_write_b128 v13, v[{T0+4*q}:{T0+4*q+3}] offset:{1024*q}")
    for q in range(2):
        e(f"ds_write_b128 v13, v[{T2+4*q}:{T2+4*q+3}] offset:{4096+1024*q}")
    e("s_waitcnt lgkmcnt(0)")
    e("s_barrier")
    for q in range(4):
        e(f"ds_read_b128 v[{RX+4*q}:{RX+4*q+3}], v13 offset:{6144+1024*q}")
    e("s_waitcnt lgkmcnt(0)")
    for j in range(0, 16, 2):
        e(f"v_pk_add_f32 v[{RX+j}:{RX+j+1}], v[{RX+j}:{RX+j+1}], v[{T1+j}:{T1+j+1}]")
    k.label(lj)
    e("s_waitcnt vmcnt(0)")
    e("v_mov_b32 v14, 0")
    e("v_mov_b32 v15, 0")
    if final:
        e("v_and_b32 v10, 31, v1")
        e("v_mul_u32_u24 v10, 1280, v10")
        e("v_add_u32 v12, v12, v10")
        e("s_mul_i32 s30, s24, 40960")
        e("s_add_u32 s29, s29, s30")
        e("s_add_u32 s31, s31, s30")
    lskip = f"L_{name}_skip"
    for u in range(3):
        if u == 2:
            e("s_cmp_eq_u32 s45, 1")
            e(f"s_cbranch_scc1 {lskip}")
        a0 = RX + 8*u
        o = WF + 4*u
        for q in range(4):
            e(f"v_lshlrev_b32 v10, 16, v{XR+4*u+q}")
            e(f"v_and_b32 v11, 0xffff0000, v{XR+4*u+q}")
            e(f"v_pk_add_f32 v[{a0+2*q}:{a0+2*q+1}], v[{a0+2*q}:{a0+2*q+1}], v[10:11]")
            if bias:
                e(f"v_lshlrev_b32 v10, 16, v{BR+4*u+q}")
                e(f"v_and_b32 v11, 0xffff0000, v{BR+4*u+q}")
                e(f"v_pk_add_f32 v[{a0+2*q}:{a0+2*q+1}], v[{a0+2*q}:{a0+2*q+1}], v[10:11]")
            e(f"v_cvt_pk_bf16_f32 v{o+q}, v{a0+2*q}, v{a0+2*q+1}")
        if final:
            so, off = ("s29", 32*u) if u < 2 else ("s31", 0)
            e(f"buffer_store_dwordx4 v[{o}:{o+3}], v12, s[40:43], {so} offen offset:{off}")
        else:
            so, off = ("s26", 1024*u) if u < 2 else ("s28", 0)
            e(f"buffer_store_dwordx4 v[{o}:{o+3}], v2, s[12:15], {so} offen offset:{off}")
            for q in range(4):
                e(f"v_lshlrev_b32 v10, 16, v{o+q}")
                e(f"v_and_b32 v11, 0xffff0000, v{o+q}")
                e("v_add_f32 v14, v14, v10")
                e("v_fmac_f32 v15, v10, v10")
                e("v_add_f32 v14, v14, v11")
                e("v_fmac_f32 v15, v11, v11")
    k.label(lskip)
    if not final:
        e("v_mov_b32 v10, v14")
        e("v_mov_b32 v11, v15")
        e("s_nop 1")
        e("v_permlane32_swap_b32 v14, v10")
        e("v_permlane32_swap_b32 v15, v11")
        e("s_nop 1")
        e("v_add_f32 v14, v14, v10")
        e("v_add_f32 v15, v15, v11")
        e("s_lshl_b32 s30, s24, 12")
        e("s_lshl_b32 s31, s17, 9")
        e("s_add_u32 s30, s30, s31")
        e("s_lshl_b32 s31, s45, 3")
        e("s_add_u32 s30, s30, s31")
        e(f"s_add_u32 s30, s30, {WS_ST}")
        e("s_mov_b32 exec_hi, 0")
        e("buffer_store_dwordx2 v[14:15], v2, s[12:15], s30 offen")
    k.label(end)
    e("s_endpgm")
    return k, AR + 4*R, XCH + 20480

def gen_attn(name):
    k = K(name)
    e = k.e
    end = f"L_{name}_end"
    RBS = 122880
    TS = 2560
    VB = 12 * TS
    AUX = 24 * TS
    e(f"s_load_dwordx2 s[6:7], s[0:1], {KA_WS}")
    e("s_cmp_ge_u32 s2, 256")
    e(f"s_cbranch_scc1 {end}")
    e("s_and_b32 s22, s2, 7")
    e("s_lshr_b32 s23, s2, 3")
    e("s_and_b32 s17, s23, 15")
    e("s_lshl_b32 s16, s22, 1")
    e("s_lshr_b32 s23, s23, 4")
    e("s_add_u32 s16, s16, s23")
    e("v_lshrrev_b32 v10, 6, v0")
    e("v_and_b32 v1, 63, v0")
    e("v_readfirstlane_b32 s18, v10")
    e("v_lshlrev_b32 v2, 4, v1")
    e("v_lshrrev_b32 v12, 5, v1")
    e("v_and_b32 v13, 31, v1")
    for u in range(3):
        e(f"v_add_u32 v10, {2*u}, v12")
        e("v_and_b32 v10, 3, v10")
        e("v_lshlrev_b32 v10, 6, v10")
        e(f"v_xor_b32 v{3+u}, v10, v2")
    e("s_and_b32 s19, s18, 1")
    e("s_lshr_b32 s20, s18, 1")
    e("s_lshl_b32 s21, s16, 2")
    e("s_mul_i32 s24, s17, 2560")
    e("s_waitcnt lgkmcnt(0)")
    srd(k, 12, 6, WS_END)
    e("s_add_u32 s25, s21, s20")
    e(f"s_mul_i32 s26, s25, {RBS}")
    e("s_add_u32 s26, s26, s24")
    e(f"s_add_u32 s26, s26, {WS_QKV}")
    e("s_mul_i32 s27, s19, 1536")
    e("s_add_u32 s27, s27, s26")
    Q1, Q2 = 16, 20
    for n in range(3):
        e(f"s_add_u32 s28, s18, {8*n}")
        e("s_cmp_ge_u32 s28, 12")
        e("s_cselect_b32 s29, 12, 0")
        e(f"s_mov_b32 s30, {WS_QKV + 80*512}")
        e(f"s_cselect_b32 s30, {WS_QKV + 160*512}, s30")
        e("s_sub_u32 s29, s28, s29")
        e("s_add_u32 s29, s29, s21")
        e("s_sub_i32 s29, s29, 8")
        e("s_max_i32 s29, s29, 0")
        e(f"s_mul_i32 s29, s29, {RBS}")
        e("s_add_u32 s29, s29, s30")
        e("s_add_u32 s29, s29, s24")
        e(f"s_mul_i32 m0, s28, {TS}")
        e("s_nop 0")
        k.vmem("buffer_load_dwordx4 v3, s[12:15], s29 offen lds", "kv")
        k.vmem("buffer_load_dwordx4 v4, s[12:15], s29 offen offset:1024 lds", "kv")
        e("s_mov_b32 exec_hi, 0")
        k.vmem("buffer_load_dwordx4 v5, s[12:15], s29 offen offset:2048 lds", "kv")
        e("s_mov_b32 exec_hi, -1")
    e("v_lshlrev_b32 v10, 4, v13")
    k.vmem(f"buffer_load_dwordx4 v[{Q1}:{Q1+3}], v2, s[12:15], s27 offen", "q")
    k.vmem(f"buffer_load_dwordx4 v[{Q2}:{Q2+3}], v10, s[12:15], s26 offen offset:1024", "q")
    e("v_lshrrev_b32 v10, 5, v0")
    e(f"v_mul_u32_u24 v11, {TS}, v10")
    e("v_lshl_add_u32 v11, v13, 4, v11")
    e(f"v_add_u32 v11, {AUX}, v11")
    e("v_add_u32 v10, s21, v10")
    e("v_cmp_gt_u32 vcc, 8, v10")
    e("v_mov_b32 v24, 0")
    e("v_mov_b32 v25, 0xf149")
    e("v_cndmask_b32 v24, v24, v25, vcc")
    e("v_mov_b32 v25, 0")
    e("v_mov_b32 v26, 0")
    e("v_mov_b32 v27, 0")
    for q in range(4):
        e(f"v_mov_b32 v{28+q}, 0x3f803f80")
    e("s_cmp_ge_u32 s18, 6")
    e(f"s_cbranch_scc1 L_{name}_noaux")
    e("ds_write_b128 v11, v[24:27]")
    e("ds_write_b128 v11, v[28:31] offset:512")
    k.label(f"L_{name}_noaux")
    e("v_and_b32 v10, 0x13, v13")
    e("v_bfe_u32 v11, v13, 2, 1")
    e("v_lshl_add_u32 v10, v11, 3, v10")
    e("v_bfe_u32 v11, v13, 3, 1")
    e("v_lshl_add_u32 v10, v11, 2, v10")
    e("v_lshlrev_b32 v10, 4, v10")
    e("s_mul_i32 s28, s19, 3")
    e("v_add_u32 v11, s28, v12")
    e("v_and_b32 v14, 3, v11")
    e("v_lshlrev_b32 v14, 6, v14")
    e("v_xor_b32 v14, v14, v10")
    e("v_lshl_add_u32 v6, v11, 9, v14")
    e(f"s_mul_i32 s29, s20, {TS}")
    e("v_add_u32 v6, s29, v6")
    e("v_xor_b32 v14, 0x80, v10")
    e("v_add_u32 v14, 1024, v14")
    e(f"v_add_u32 v15, {AUX}, v10")
    e("v_cmp_eq_u32 vcc, 1, v12")
    e("s_nop 1")
    e("v_cndmask_b32 v7, v14, v15, vcc")
    e("v_add_u32 v7, s29, v7")
    e("v_and_b32 v10, 1, v1")
    e("v_add_u32 v10, s28, v10")
    e("v_bfe_u32 v11, v1, 1, 1")
    e("v_lshlrev_b32 v11, 3, v11")
    e("v_lshl_add_u32 v11, v10, 9, v11")
    e("v_and_b32 v14, 0x13, v1")
    e("v_cmp_eq_u32 vcc, 16, v14")
    e("s_lshl_b32 s30, s19, 3")
    e("s_add_u32 s30, s30, 1024")
    e("v_mov_b32 v15, s30")
    e("v_cndmask_b32 v11, v11, v15, vcc")
    e("v_mov_b32 v15, 2")
    e("v_cndmask_b32 v10, v10, v15, vcc")
    e("v_cmp_lt_u32 vcc, 16, v14")
    e(f"v_mov_b32 v15, {AUX - VB + 512}")
    e("s_lshl_b32 s30, s19, 1")
    e("s_sub_u32 s30, 3, s30")
    e("v_cndmask_b32 v11, v11, v15, vcc")
    e("v_mov_b32 v15, s30")
    e("v_cndmask_b32 v10, v10, v15, vcc")
    e("v_and_b32 v10, 3, v10")
    e("v_lshlrev_b32 v10, 6, v10")
    e("v_bfe_u32 v14, v1, 2, 2")
    e("v_lshl_add_u32 v14, v12, 3, v14")
    e("v_lshlrev_b32 v14, 4, v14")
    e("v_xor_b32 v15, v14, v10")
    e(f"s_add_u32 s30, s29, {VB}")
    e("v_add3_u32 v8, v15, v11, s30")
    e("v_xor_b32 v15, 64, v15")
    e("v_add3_u32 v9, v15, v11, s30")
    e("v_lshlrev_b32 v10, 3, v12")
    e("v_sub_u32 v10, v13, v10")
    for rho in range(16):
        G, j = divmod(rho, 8)
        e(f"v_cmp_le_i32_e64 s[{40+2*rho}:{41+2*rho}], {16*G+j}, v10")
    e("s_cmp_eq_u32 s19, 0")
    e("s_cselect_b32 s32, -1, 0")
    e("s_mov_b32 s33, 0")
    e("s_cselect_b32 s34, 0, -1")
    e("s_mov_b32 s35, 0")
    e("v_mul_u32_u24 v10, 0x3f80, v12")
    k.wait_vm("q")
    e(f"v_cndmask_b32 v{Q2}, v10, v{Q2}, s[32:33]")
    e(f"v_cndmask_b32 v{Q2+1}, 0, v{Q2+1}, s[32:33]")
    e(f"v_cndmask_b32 v{Q2+2}, 0, v{Q2+2}, s[34:35]")
    e(f"v_cndmask_b32 v{Q2+3}, 0, v{Q2+3}, s[34:35]")
    e("s_waitcnt lgkmcnt(0)")
    e("s_barrier")
    SB = 104; KF = 32; OA = 16
    def kread(kt):
        e(f"ds_read_b128 v[{KF+8*kt}:{KF+8*kt+3}], v6 offset:{kt*TS}")
        e(f"ds_read_b128 v[{KF+8*kt+4}:{KF+8*kt+7}], v7 offset:{kt*TS}")
    AHEAD = 4
    for kt in range(AHEAD): kread(kt)
    for kt in range(9):
        outstanding = min(9, kt + AHEAD) - kt - 1
        e(f"s_waitcnt lgkmcnt({2*outstanding})")
        sreg = SB + 16*kt
        e(f"v_mfma_f32_32x32x16_bf16 v[{sreg}:{sreg+15}], v[{KF+8*kt}:{KF+8*kt+3}], v[{Q1}:{Q1+3}], 0")
        e(f"v_mfma_f32_32x32x16_bf16 v[{sreg}:{sreg+15}], v[{KF+8*kt+4}:{KF+8*kt+7}], v[{Q2}:{Q2+3}], v[{sreg}:{sreg+15}]")
        if kt + AHEAD < 9: kread(kt + AHEAD)
    def vread(kt):
        for G in range(2):
            d = KF + 8*kt + 4*G
            e(f"ds_read_b64_tr_b16 v[{d}:{d+1}], v8 offset:{kt*TS + G*256}")
            e(f"ds_read_b64_tr_b16 v[{d+2}:{d+3}], v9 offset:{kt*TS + G*256}")
    for kt in range(3): vread(kt)
    MX = 24
    vals = [SB + 16*kt + r for kt in range(1, 8) for r in range(16)]
    chains = [[] for _ in range(4)]
    for i, v in enumerate(vals): chains[i % 4].append(v)
    ops = []
    for ci, ch in enumerate(chains):
        lst = [f"v_max_f32 v{MX+ci}, v{ch[0]}, v{ch[1]}"]
        for i in range(2, len(ch), 2):
            lst.append(f"v_max3_f32 v{MX+ci}, v{MX+ci}, v{ch[i]}, v{ch[i+1]}")
        ops.append(lst)
    n = 0
    for i in range(len(ops[0])):
        for ci in range(4):
            e(ops[ci][i])
        if i in (3, 7):
            e("s_waitcnt lgkmcnt(0)")
            for kt in range(3 + 3*n, 6 + 3*n): vread(kt)
            n += 1
    S0, S8 = SB, SB + 128
    for rho in range(16):
        e(f"v_cndmask_b32 v{S8+rho}, v{S0+rho}, v{S8+rho}, s[{40+2*rho}:{41+2*rho}]")
    for rho in range(0, 16, 2):
        ci = (rho // 2) % 4
        e(f"v_max3_f32 v{MX+ci}, v{MX+ci}, v{S8+rho}, v{S8+rho+1}")
    e(f"v_max_f32 v{MX}, v{MX}, v{MX+1}")
    e(f"v_max3_f32 v{MX}, v{MX}, v{MX+2}, v{MX+3}")
    e(f"v_mov_b32 v{MX+1}, v{MX}")
    e("s_nop 1")
    e(f"v_permlane32_swap_b32 v{MX}, v{MX+1}")
    cc = math.log2(math.e) / math.sqrt(20.0)
    e(f"s_mov_b32 s36, {f32bits(cc):#x}")
    e(f"v_max_f32 v{MX}, v{MX}, v{MX+1}")
    e(f"v_mul_f32 v{MX}, {f32bits(-cc):#x}, v{MX}")
    e("s_waitcnt lgkmcnt(0)")
    OACC = S0
    P0 = 16
    order = [1, 2, 3, 4, 5, 6, 7, 8]
    first = True
    pending_mfma = []
    for kt in order:
        sr_ = SB + 16*kt
        body = []
        for r in range(16):
            body.append(f"v_fma_f32 v{sr_+r}, v{sr_+r}, s36, v{MX}")
        ex = [f"v_exp_f32 v{sr_+r}, v{sr_+r}" for r in range(16)]
        seq = body[:4]
        for r in range(16):
            seq.append(ex[r])
            if r + 4 < 16: seq.append(body[r+4])
        if kt < 8:
            for r in range(0, 16, 2):
                seq.append(f"v_cvt_pk_bf16_f32 v{sr_+r//2}, v{sr_+r}, v{sr_+r+1}")
        else:
            for r in range(0, 16, 2):
                seq.append(f"v_cndmask_b32 v28, v{sr_+r}, 0, s[{40+2*r}:{41+2*r}]")
                seq.append(f"v_cndmask_b32 v29, v{sr_+r+1}, 0, s[{42+2*r}:{43+2*r}]")
                seq.append(f"v_cndmask_b32 v30, 0, v{sr_+r}, s[{40+2*r}:{41+2*r}]")
                seq.append(f"v_cndmask_b32 v31, 0, v{sr_+r+1}, s[{42+2*r}:{43+2*r}]")
                seq.append(f"v_cvt_pk_bf16_f32 v{P0+r//2}, v28, v29")
                seq.append(f"v_cvt_pk_bf16_f32 v{sr_+r//2}, v30, v31")
        for i, ins in enumerate(seq):
            e(ins)
            if pending_mfma and i in (2, 14):
                e(pending_mfma.pop(0))
        for G in range(2):
            csrc = "0" if first else f"v[{OACC}:{OACC+15}]"
            first = False
            pending_mfma.append(f"v_mfma_f32_32x32x16_bf16 v[{OACC}:{OACC+15}], v[{KF+8*kt+4*G}:{KF+8*kt+4*G+3}], v[{sr_+4*G}:{sr_+4*G+3}], {csrc}")
    for G in range(2):
        pending_mfma.append(f"v_mfma_f32_32x32x16_bf16 v[{OACC}:{OACC+15}], v[{KF+4*G}:{KF+4*G+3}], v[{P0+4*G}:{P0+4*G+3}], v[{OACC}:{OACC+15}]")
    e("s_nop 1")
    for m in pending_mfma: e(m)
    e("s_mul_i32 s26, s25, 40960")
    e("s_add_u32 s26, s26, s24")
    e(f"s_add_u32 s26, s26, {WS_O}")
    e("s_mul_i32 s27, s19, 1536")
    e("s_add_u32 s27, s27, s26")
    e("s_lshl_b32 s28, s19, 3")
    e("s_add_u32 s26, s26, s28")
    e("s_nop 7")
    e("s_nop 7")
    e(f"v_rcp_f32 v24, v{OACC+12}")
    e("s_nop 0")
    for r in range(12):
        e(f"v_mul_f32 v{OACC+r}, v{OACC+r}, v24")
    for r in range(0, 12, 2):
        e(f"v_cvt_pk_bf16_f32 v{32+r//2}, v{OACC+r}, v{OACC+r+1}")
    e("buffer_store_dwordx4 v[32:35], v2, s[12:15], s27 offen")
    e("s_mov_b32 exec_hi, 0")
    e("buffer_store_dwordx2 v[36:37], v2, s[12:15], s26 offen offset:1024")
    k.label(end)
    e("s_endpgm")
    return k, 248, 36 * TS

def main(out_path, nlaunch=None):
    ref = open(f"cdna_kernels/{NAME}.s.ref").read().split("\n")
    hdr = [l for l in ref if l.startswith(";") and "@launch" not in l and "Override launch" not in l and "grid=ceil" not in l]
    prep, prep_v = gen_prep(0)
    qkv, qkv_v, qkv_l = gen_gemm1("qkv", 4, 1920, KA_WQKV, WS_QKV, WS_AUGQ, False)
    att, att_v, att_l = gen_attn("attn")
    wo, wo_v, wo_l = gen_gemm2("wo", 640, WS_O, KA_WO, False, False)
    m1, m1_v, m1_l = gen_gemm1("mlp1", 3, 1536, KA_W1, WS_H, WS_AUG1, True)
    m2, m2_v, m2_l = gen_gemm2("mlp2", 1536, WS_H, KA_W2, True, False)
    m2f, m2f_v, m2f_l = gen_gemm2("mlp2f", 1536, WS_H, KA_W2, True, True)
    ks = {"prep": (prep, prep_v, 9216, 236, 256), "qkv": (qkv, qkv_v, qkv_l, 256, 256), "attn": (att, att_v, att_l, 256, 512),
          "wo": (wo, wo_v, wo_l, 256, 256), "mlp1": (m1, m1_v, m1_l, 256, 256), "mlp2": (m2, m2_v, m2_l, 256, 256),
          "mlp2f": (m2f, m2f_v, m2f_l, 256, 256)}
    seq = ["prep", "qkv", "attn", "wo", "mlp1", "mlp2", "qkv", "attn", "wo", "mlp1", "mlp2f"]
    if nlaunch: seq = seq[:nlaunch]
    out = "\n".join(hdr) + "\n"
    for n in seq:
        _, _, lds, g, b = ks[n]
        out += f"; @launch kernel={n}_kernel grid=({g},1,1) block=({b},1,1) lds={lds}\n"
    out += '.amdgcn_target "amdgcn-amd-amdhsa--gfx950"\n.text\n'
    for n in ks:
        if n == "qkv": out += ".p2align 8\nL_code_begin:\n"
        out += kernel_header(n + "_kernel") + ks[n][0].text()
    out += "L_code_end:\n"
    out += '.section .rodata,"a"\n'
    for n in ks:
        out += descriptor(n + "_kernel", ks[n][1])
    open(out_path, "w").write(out)

if __name__ == "__main__":
    main(sys.argv[1] if len(sys.argv) > 1 else f"cdna_kernels/{NAME}.s")
```

```python
import sys, math, struct
from asmlib import *

NAME = "interleave_layers__sliding_block__dense_activation_squared_relu__prompt"
S_, D_, F_ = 2048, 640, 1536
KA_X, KA_WQKV, KA_WO, KA_W1, KA_B1, KA_W2, KA_B2, KA_OUT, KA_DBG, KA_WS = 0, 8, 16, 32, 40, 48, 56, 64, 72, 80
L_XA, L_KV, L_O, L_XB, L_H, L_STA, L_STB = 0, 0x280000, 0x780000, 0xA00000, 0xC80000, 0x1280000, 0x12C0000
LS = 0x1300000
WTQ = 2 * LS;            WTQ_S = 39 * 4096
WT1 = WTQ + 16 * WTQ_S;  WT1_S = 31 * 4096
WTO = WT1 + 16 * WT1_S;  WTO_S = 102400
WT2 = WTO + 8 * WTO_S;   WT2_S = 245760
FL = WT2 + 8 * WT2_S + 0x10000
FL = (FL + 0xFFF) & ~0xFFF
F_O, F_X, F_H, F_KV = 0, 128, 192, 0x8000
FLS = 0x28000
F_PUR = 2 * FLS
FL_BYTES = 2 * FLS + 0x1000
WS_END = FL + FL_BYTES
WS_PROF = 0x4000000
PROF = False
OPT = {}
FORCE_SLOW = False
SPIN_MAX = 200000

def f32bits(x): return struct.unpack("<I", struct.pack("<f", x))[0]

def srd(k, d, lo, nbytes):
    k.e(f"s_mov_b32 s{d}, s{lo}")
    k.e(f"s_mov_b32 s{d+1}, s{lo+1}")
    k.e(f"s_mov_b32 s{d+2}, {nbytes}")
    k.e(f"s_mov_b32 s{d+3}, 0x00020000")

def emit_tr_lane(k, vl, vt0, vdst, hf_stride, r_stride, ch_stride):
    e = k.e
    e(f"v_lshrrev_b32 {vt0}, 5, {vl}")
    e(f"v_mul_u32_u24 {vdst}, {hf_stride}, {vt0}")
    e(f"v_bfe_u32 {vt0}, {vl}, 2, 2")
    e(f"v_mul_u32_u24 {vt0}, {r_stride}, {vt0}")
    e(f"v_add_u32 {vdst}, {vdst}, {vt0}")
    e(f"v_bfe_u32 {vt0}, {vl}, 4, 1")
    e(f"v_mul_u32_u24 {vt0}, {ch_stride}, {vt0}")
    e(f"v_add_u32 {vdst}, {vdst}, {vt0}")
    e(f"v_and_b32 {vt0}, 1, {vl}")
    e(f"v_lshl_add_u32 {vdst}, {vt0}, 4, {vdst}")
    e(f"v_bfe_u32 {vt0}, {vl}, 1, 1")
    e(f"v_lshl_add_u32 {vdst}, {vt0}, 3, {vdst}")

def emit_dest(k, voc, vhf, va, vi, vdst, t0, t1, t2):
    e = k.e
    e(f"v_mul_u32_u24 {t0}, s44, {voc}")
    e(f"v_lshrrev_b32 {t0}, 16, {t0}")
    e(f"v_mul_u32_u24 {t1}, s45, {t0}")
    e(f"v_sub_u32 {t1}, {voc}, {t1}")
    e(f"v_add_u32 {t1}, s46, {t1}")
    e(f"v_mul_lo_u32 {vdst}, {t0}, s47")
    e(f"v_and_b32 {t0}, 1, {t1}")
    e(f"v_lshl_add_u32 {t0}, {t0}, 2, {vi}")
    e(f"v_lshl_add_u32 {t0}, {va}, 3, {t0}")
    e(f"v_bfe_u32 {t2}, {t1}, 1, 1")
    e(f"v_lshl_add_u32 {t2}, {t2}, 4, {t0}")
    e(f"v_lshlrev_b32 {t2}, 4, {t2}")
    e(f"v_lshl_add_u32 {t2}, {vhf}, 9, {t2}")
    e(f"v_lshrrev_b32 v38, 2, {t1}")
    e(f"v_lshl_add_u32 {t2}, v38, 10, {t2}")
    e(f"v_lshl_add_u32 v38, {va}, 2, {vi}")
    e(f"v_add_u32 v38, 16, v38")
    e(f"s_add_u32 s51, s48, 2")
    e(f"v_cmp_gt_u32 vcc, s51, {t1}")
    e("s_nop 1")
    e(f"v_cndmask_b32 {t0}, v38, {t0}, vcc")
    e(f"v_lshlrev_b32 {t0}, 4, {t0}")
    e(f"v_mul_u32_u24 v38, s50, {vhf}")
    e(f"v_add3_u32 {t0}, {t0}, v38, s49")
    e(f"v_cmp_gt_u32 vcc, s48, {t1}")
    e("s_nop 1")
    e(f"v_cndmask_b32 {t0}, {t0}, {t2}, vcc")
    e(f"v_add_u32 {vdst}, {vdst}, {t0}")

def set_params(k, which):
    P = {"q": (13108, 5, WTQ_S, 12, 3072, 384), "1": (5462, 12, WT1_S, 99, 0, 0),
         "o": (6554, 10, WTO_S, 8, 2048, 256), "2": (6554, 10, WT2_S, 8, 2048, 256)}[which]
    for r, v in zip((44, 45, 47, 48, 49, 50), P):
        k.e(f"s_mov_b32 s{r}, {v}")

NPREP = 680
def gen_prep():
    k = K("prep")
    e = k.e
    e("s_load_dwordx4 s[4:7], s[0:1], 0")
    e("s_load_dwordx2 s[8:9], s[0:1], 16")
    e("s_load_dwordx4 s[12:15], s[0:1], 32")
    e("s_load_dwordx2 s[10:11], s[0:1], 48")
    e("s_load_dwordx2 s[16:17], s[0:1], 80")
    e(f"s_cmp_ge_u32 s2, {NPREP}")
    e("s_cbranch_scc1 L_prep_end")
    e("v_lshrrev_b32 v1, 6, v0")
    e("v_and_b32 v2, 63, v0")
    e("v_readfirstlane_b32 s18, v1")
    e("v_lshrrev_b32 v5, 5, v2")
    e("s_cmp_ge_u32 s2, 240")
    e("s_cbranch_scc1 L_prep_w")
    e("s_cmp_ge_u32 s2, 112")
    e("s_cbranch_scc1 L_prep_x")
    e("s_cmp_ge_u32 s2, 108")
    e("s_cbranch_scc1 L_prep_end")
    e("s_cmp_lt_u32 s2, 60")
    e("s_cbranch_scc1 L_prep_csq")
    set_params(k, "1")
    e("s_mov_b32 s46, 0")
    e("s_sub_u32 s28, s2, 60")
    e("s_lshl_b32 s52, s28, 2")
    e("s_mov_b32 s29, 3072")
    e(f"s_mov_b32 s31, {WT1 + 40*3072}")
    e("s_waitcnt lgkmcnt(0)")
    srd(k, 24, 12, D_*F_*2)
    e("s_mov_b32 s42, 3072")
    e("s_branch L_prep_cs")
    k.label("L_prep_csq")
    set_params(k, "q")
    e("s_mov_b32 s28, s2")
    e("s_mul_i32 s53, s28, 3277")
    e("s_lshr_b32 s53, s53, 16")
    e("s_mul_i32 s54, s53, 80")
    e("s_lshl_b32 s52, s28, 2")
    e("s_sub_u32 s52, s52, s54")
    e("s_cmp_eq_u32 s53, 0")
    e("s_cselect_b32 s46, 15, 0")
    e("s_mul_i32 s54, s53, 5")
    e("s_add_u32 s46, s46, s54")
    e("s_sub_u32 s46, s46, 5")
    e("s_mov_b32 s29, 3840")
    e(f"s_mov_b32 s31, {WTQ + 40*3840}")
    e("s_waitcnt lgkmcnt(0)")
    srd(k, 24, 6, D_*3*D_*2)
    e("s_mov_b32 s42, 0")
    k.label("L_prep_cs")
    srd(k, 20, 16, WS_END)
    e("s_lshl_b32 s28, s28, 6")
    e("s_mov_b32 s40, s14")
    e("s_mov_b32 s41, s15")
    e("s_mov_b32 s43, 0x00020000")
    e("v_lshrrev_b32 v4, 2, v2")
    e("v_and_b32 v3, 3, v2")
    e("v_mul_lo_u32 v6, v4, s29")
    e("v_lshl_add_u32 v6, v3, 4, v6")
    e("s_mul_i32 s32, s18, 160")
    e("s_mul_i32 s32, s32, s29")
    e("s_add_u32 s32, s32, s28")
    e("s_lshl_b32 s33, s29, 4")
    for t in range(10):
        e(f"buffer_load_dwordx4 v[{44+4*t}:{47+4*t}], v6, s[24:27], s32 offen")
        if t < 9:
            e("s_add_u32 s32, s32, s33")
    e("v_and_b32 v7, 31, v0")
    e("v_lshlrev_b32 v8, 1, v7")
    e("buffer_load_ushort v9, v8, s[40:43], s28 offen")
    e("v_lshrrev_b32 v24, 3, v7")
    e("v_add_u32 v24, s52, v24")
    e("v_bfe_u32 v25, v7, 2, 1")
    e("v_and_b32 v26, 3, v7")
    emit_dest(k, "v24", "v5", "v25", "v26", "v27", "v28", "v29", "v30")
    for q in range(8):
        e(f"v_mov_b32 v{16+q}, 0")
    for t in range(10):
        e(f"s_waitcnt vmcnt({10-t})")
        for q in range(4):
            r = 44 + 4*t + q
            e(f"v_lshlrev_b32 v32, 16, v{r}")
            e(f"v_and_b32 v33, 0xffff0000, v{r}")
            e(f"v_add_f32 v{16+2*q}, v{16+2*q}, v32")
            e(f"v_add_f32 v{17+2*q}, v{17+2*q}, v33")
    e("v_lshlrev_b32 v10, 5, v0")
    e("ds_write_b128 v10, v[16:19]")
    e("ds_write_b128 v10, v[20:23] offset:16")
    e("v_lshrrev_b32 v11, 5, v0")
    e("v_lshlrev_b32 v12, 10, v11")
    e("v_lshl_add_u32 v12, v7, 2, v12")
    e("s_waitcnt lgkmcnt(0)")
    e("s_barrier")
    for i in range(8):
        e(f"ds_read_b32 v{16+i}, v12 offset:{128*i}")
    e("s_waitcnt lgkmcnt(0)")
    for i in range(1, 8):
        e(f"v_add_f32 v16, v16, v{16+i}")
    e("v_lshlrev_b32 v13, 2, v0")
    e("ds_write_b32 v13, v16 offset:8192")
    e("v_lshlrev_b32 v13, 2, v7")
    e("s_waitcnt lgkmcnt(0)")
    e("s_barrier")
    e("s_cmp_lg_u32 s18, 0")
    e("s_cbranch_scc1 L_prep_end")
    for i in range(8):
        e(f"ds_read_b32 v{16+i}, v13 offset:{8192+128*i}")
    e("s_waitcnt lgkmcnt(0)")
    for i in range(1, 8):
        e(f"v_add_f32 v16, v16, v{16+i}")
    e("v_cvt_pk_bf16_f32 v17, v16, v16")
    e("v_and_b32 v18, 0xffff0000, v17")
    e("v_sub_f32 v18, v16, v18")
    e("v_cvt_pk_bf16_f32 v20, v16, v18")
    e("s_waitcnt vmcnt(0)")
    e("v_and_b32 v21, 0xffff, v17")
    e("v_lshl_or_b32 v21, v9, 16, v21")
    e("v_mov_b32 v22, v9")
    e("v_mov_b32 v23, 0")
    e("v_cmp_eq_u32 vcc, 0, v5")
    e("s_nop 1")
    e("v_cndmask_b32 v20, v23, v20, vcc")
    e("v_cndmask_b32 v21, v23, v21, vcc")
    e("v_cndmask_b32 v22, v23, v22, vcc")
    e("buffer_store_dwordx4 v[20:23], v27, s[20:23], s31 offen")
    e("s_endpgm")
    k.label("L_prep_x")
    e("s_sub_u32 s3, s2, 112")
    e("s_and_b32 s28, s3, 7")
    e("s_lshr_b32 s29, s3, 3")
    e("s_lshl_b32 s30, s28, 3")
    e("s_lshr_b32 s31, s29, 1")
    e("s_add_u32 s30, s30, s31")
    e("s_and_b32 s31, s29, 1")
    e("s_lshl_b32 s32, s31, 2")
    e("s_add_u32 s32, s32, s18")
    e("s_mul_i32 s33, s32, 10")
    e("s_mul_i32 s34, s30, 40960")
    e("s_lshl_b32 s35, s33, 4")
    e("s_add_u32 s35, s35, s34")
    e("s_lshl_b32 s36, s33, 9")
    e("s_add_u32 s36, s36, s34")
    e("s_add_u32 s37, s36, 4096")
    e("v_and_b32 v4, 31, v2")
    e("v_mul_u32_u24 v6, 1280, v4")
    e("v_lshl_add_u32 v6, v5, 4, v6")
    e("v_lshlrev_b32 v7, 4, v2")
    e("s_waitcnt lgkmcnt(0)")
    srd(k, 24, 4, S_*D_*2)
    srd(k, 20, 16, WS_END)
    for t in range(5):
        e(f"buffer_load_dwordx4 v[{8+4*t}:{11+4*t}], v6, s[24:27], s35 offen offset:{32*t}")
    nz = FL_BYTES // 4096
    assert nz <= 128
    for q in range(4):
        e(f"v_mov_b32 v{40+q}, 0")
    e("v_lshlrev_b32 v44, 4, v0")
    e("s_lshl_b32 s38, s3, 12")
    e(f"s_add_u32 s38, s38, {FL}")
    e(f"s_cmp_ge_u32 s3, {nz}")
    e("s_cbranch_scc1 L_prep_nozero")
    e("buffer_store_dwordx4 v[40:43], v44, s[20:23], s38 offen")
    k.label("L_prep_nozero")
    e("s_cmp_lg_u32 s29, 12")
    e("s_cbranch_scc1 L_prep_nocode")
    e("s_getpc_b64 s[40:41]")
    k.label("L_prep_pc")
    e("s_add_u32 s40, s40, L_code_begin-L_prep_pc")
    e("s_addc_u32 s41, s41, 0")
    e("s_mov_b32 s42, L_code_end-L_code_begin")
    e("s_mov_b32 s43, 0x00020000")
    e("v_lshlrev_b32 v45, 7, v0")
    e("buffer_load_dword v46, v45, s[40:43], 0 offen")
    e("s_mov_b32 s39, 32768")
    e("buffer_load_dword v47, v45, s[40:43], s39 offen")
    k.label("L_prep_nocode")
    e("v_mov_b32 v30, 0")
    e("v_mov_b32 v31, 0")
    e("s_waitcnt vmcnt(0)")
    for t in range(5):
        if t < 4:
            e(f"buffer_store_dwordx4 v[{8+4*t}:{11+4*t}], v7, s[20:23], s36 offen offset:{1024*t}")
        else:
            e(f"buffer_store_dwordx4 v[{8+4*t}:{11+4*t}], v7, s[20:23], s37 offen")
    for t in range(5):
        for q in range(4):
            r = 8 + 4*t + q
            e(f"v_lshlrev_b32 v32, 16, v{r}")
            e(f"v_and_b32 v33, 0xffff0000, v{r}")
            e("v_add_f32 v30, v30, v32")
            e("v_fmac_f32 v31, v32, v32")
            e("v_add_f32 v30, v30, v33")
            e("v_fmac_f32 v31, v33, v33")
    e("v_lshlrev_b32 v34, 4, v4")
    e("v_lshl_add_u32 v34, v5, 3, v34")
    e("s_lshl_b32 s38, s30, 12")
    e("s_lshl_b32 s39, s32, 9")
    e("s_add_u32 s38, s38, s39")
    e(f"s_add_u32 s38, s38, {L_STA}")
    e("buffer_store_dwordx2 v[30:31], v34, s[20:23], s38 offen")
    e("s_endpgm")
    k.label("L_prep_w")
    e("s_sub_u32 s3, s2, 240")
    e("s_mov_b32 s46, 0")
    e("s_waitcnt lgkmcnt(0)")
    e("s_cmp_ge_u32 s3, 150")
    e("s_cbranch_scc1 L_prep_w1")
    set_params(k, "q")
    e("s_mul_i32 s28, s3, 6554")
    e("s_lshr_b32 s28, s28, 16")
    e("s_mul_i32 s30, s28, 10")
    e("s_sub_u32 s30, s3, s30")
    e("s_lshl_b32 s30, s30, 2")
    e("s_add_u32 s30, s30, s18")
    e("s_mul_i32 s53, s28, 13108")
    e("s_lshr_b32 s53, s53, 16")
    e("s_mul_i32 s54, s53, 80")
    e("s_lshl_b32 s52, s28, 4")
    e("s_sub_u32 s52, s52, s54")
    e("s_cmp_eq_u32 s53, 0")
    e("s_cselect_b32 s46, 15, 0")
    e("s_mul_i32 s54, s53, 5")
    e("s_add_u32 s46, s46, s54")
    e("s_sub_u32 s46, s46, 5")
    e("s_mov_b32 s29, 3840")
    e("s_mul_i32 s31, s30, 3840")
    e(f"s_add_u32 s31, s31, {WTQ}")
    srd(k, 24, 6, D_*3*D_*2)
    e("s_branch L_prep_wgo")
    k.label("L_prep_w1")
    e("s_cmp_ge_u32 s3, 270")
    e("s_cbranch_scc1 L_prep_wo")
    set_params(k, "1")
    e("s_sub_u32 s3, s3, 150")
    e("s_mul_i32 s28, s3, 6554")
    e("s_lshr_b32 s28, s28, 16")
    e("s_mul_i32 s30, s28, 10")
    e("s_sub_u32 s30, s3, s30")
    e("s_lshl_b32 s30, s30, 2")
    e("s_add_u32 s30, s30, s18")
    e("s_lshl_b32 s52, s28, 4")
    e("s_mov_b32 s29, 3072")
    e("s_mul_i32 s31, s30, 3072")
    e(f"s_add_u32 s31, s31, {WT1}")
    srd(k, 24, 12, D_*F_*2)
    e("s_branch L_prep_wgo")
    k.label("L_prep_wo")
    e("s_cmp_ge_u32 s3, 320")
    e("s_cbranch_scc1 L_prep_w2")
    set_params(k, "o")
    e("s_sub_u32 s3, s3, 270")
    e("s_mul_i32 s28, s3, 6554")
    e("s_lshr_b32 s28, s28, 16")
    e("s_mul_i32 s30, s28, 10")
    e("s_sub_u32 s30, s3, s30")
    e("s_lshl_b32 s30, s30, 2")
    e("s_add_u32 s30, s30, s18")
    e("s_mov_b32 s55, 20")
    e(f"s_mov_b32 s56, {WTO}")
    srd(k, 24, 8, D_*D_*2)
    e("s_branch L_prep_wg2")
    k.label("L_prep_w2")
    set_params(k, "2")
    e("s_sub_u32 s3, s3, 320")
    e("s_mul_i32 s28, s3, 2731")
    e("s_lshr_b32 s28, s28, 16")
    e("s_mul_i32 s30, s28, 24")
    e("s_sub_u32 s30, s3, s30")
    e("s_lshl_b32 s30, s30, 2")
    e("s_add_u32 s30, s30, s18")
    e("s_mov_b32 s55, 48")
    e(f"s_mov_b32 s56, {WT2}")
    srd(k, 24, 10, F_*D_*2)
    k.label("L_prep_wg2")
    e("s_lshl_b32 s52, s28, 4")
    e("s_mov_b32 s29, 1280")
    e("s_cmp_ge_u32 s30, s55")
    e("s_cselect_b32 s57, s55, 0")
    e("s_cselect_b32 s58, 2560, 0")
    e("s_sub_u32 s57, s30, s57")
    e("s_mul_i32 s31, s57, 5120")
    e("s_add_u32 s31, s31, s58")
    e("s_add_u32 s31, s31, s56")
    k.label("L_prep_wgo")
    srd(k, 20, 16, WS_END)
    e("v_lshrrev_b32 v10, 4, v2")
    e("v_lshlrev_b32 v3, 6, v10")
    e("v_bfe_u32 v10, v2, 2, 2")
    e("v_mul_lo_u32 v10, v10, s29")
    e("v_and_b32 v11, 3, v2")
    e("v_lshlrev_b32 v11, 4, v11")
    e("v_add3_u32 v3, v3, v10, v11")
    e("s_lshl_b32 s32, s30, 4")
    e("s_mul_i32 s32, s32, s29")
    e("s_lshl_b32 s33, s28, 8")
    e("s_add_u32 s32, s32, s33")
    e("s_lshl_b32 s33, s29, 2")
    e("s_lshl_b32 s34, s18, 12")
    for t in range(4):
        e(f"s_add_u32 m0, s34, {1024*t}")
        e("s_nop 0")
        e("buffer_load_dwordx4 v3, s[24:27], s32 offen lds")
        e("s_add_u32 s32, s32, s33")
    emit_tr_lane(k, "v2", "v10", "v7", 2048, 64, 32)
    e("v_add_u32 v7, s34, v7")
    e("v_bfe_u32 v24, v2, 4, 1")
    e("v_bfe_u32 v25, v2, 3, 1")
    e("v_bfe_u32 v27, v2, 2, 1")
    e("v_and_b32 v26, 3, v2")
    e("v_lshl_add_u32 v24, v24, 1, v27")
    e("v_add_u32 v24, s52, v24")
    for cb in range(4):
        if cb: e("v_add_u32 v24, 4, v24")
        emit_dest(k, "v24", "v5", "v25", "v26", f"v{32+cb}", "v28", "v29", "v30")
    e("s_waitcnt vmcnt(0)")
    for cb in range(4):
        for rho in range(2):
            e(f"ds_read_b64_tr_b16 v[{44+4*cb+2*rho}:{45+4*cb+2*rho}], v7 offset:{rho*1024 + cb*256}")
    for cb in range(4):
        e(f"s_waitcnt lgkmcnt({6-2*cb})")
        e(f"buffer_store_dwordx4 v[{44+4*cb}:{47+4*cb}], v{32+cb}, s[20:23], s31 offen")
    k.label("L_prep_end")
    e("s_endpgm")
    return k, 96


class St(K):
    def __init__(self, name):
        super().__init__(name)
        self.dq = []
    def reset_vm(self): self.vm = []
    def reset_ds(self): self.dq = []
    def ds(self, s, tag=None):
        self.e(s); self.dq.append(tag)
    def n_ds(self, tag):
        last = max(i for i, t in enumerate(self.dq) if t == tag)
        n = len(self.dq) - 1 - last
        assert n <= 15
        return n
    def n_vm(self, tag):
        last = max(i for i, t in enumerate(self.vm) if t == tag)
        return min(63, len(self.vm) - 1 - last)
    def wait(self, vm=None, ds=None):
        p = []
        if vm is not None: p.append(f"vmcnt({self.n_vm(vm)})")
        if ds is not None: p.append(f"lgkmcnt({self.n_ds(ds)})")
        self.e("s_waitcnt " + " ".join(p))

def stamp(k, idx):
    if not PROF: return
    k.e("s_memtime s[92:93]")
    k.e("s_waitcnt lgkmcnt(0)")
    k.e(f"s_add_u32 s94, s95, {idx}")
    k.e("s_mov_b32 m0, s94")
    k.e("s_nop 0")
    k.e("v_writelane_b32 v3, s92, m0")

def poll(k, soff, nflags, tmpv, thr):
    e = k.e
    L = k.newlabel("L_poll")
    e(f"v_lshlrev_b32 v{tmpv}, 2, v1")
    e(f"s_mov_b64 exec, {(1 << nflags) - 1:#x}")
    e("s_mov_b32 s90, 0")
    k.label(L)
    e(f"buffer_load_dword v{tmpv+1}, v{tmpv}, s[4:7], {soff} offen sc1")
    e("s_add_u32 s90, s90, 1")
    e(f"s_cmp_gt_u32 s90, {SPIN_MAX}")
    e(f"s_cbranch_scc1 {L}_out")
    e("s_waitcnt vmcnt(0)")
    e(f"v_cmp_gt_u32 vcc, {thr}, v{tmpv+1}")
    e(f"s_cbranch_vccnz {L}")
    k.label(L + "_out")
    e("s_mov_b64 exec, -1")
    k.reset_vm()

def publish(k, soff, tmpv, sc, val):
    e = k.e
    e(f"v_mov_b32 v{tmpv}, 0")
    e(f"v_mov_b32 v{tmpv+1}, {val}")
    e("s_waitcnt vmcnt(0)")
    e("s_mov_b64 exec, 1")
    e(f"buffer_store_dword v{tmpv+1}, v{tmpv}, s[4:7], {soff} offen{sc}")
    e("s_mov_b64 exec, -1")
    k.reset_vm()

def dual(k, cold, fn):
    ls = k.newlabel("L_slow"); lb = k.newlabel("L_back")
    k.e("s_cmp_lg_u32 s22, 0")
    k.e(f"s_cbranch_scc1 {ls}")
    fn(k, "")
    k.label(lb)
    cold.label(ls)
    fn(cold, " sc1")
    cold.e(f"s_branch {lb}")

CTL = 163840 - 64
C_LAND, C_CONS, C_ATT, C_ATT2, C_XF, C_LOC, C_HK, C_HV, C_RD, C_MODE = CTL, CTL + 4, CTL + 8, CTL + 12, CTL + 16, CTL + 20, CTL + 24, CTL + 28, CTL + 32, CTL + 48
REP = 0x01010101
SEQ_L = 48
VC, VB_, VT = 248, 249, 250

def chk(k, sreg, T, fail):
    k.e(f"s_sub_u32 {sreg}, {sreg}, s80")
    k.e(f"s_sub_u32 {sreg}, {sreg}, {T*REP:#x}")
    k.e(f"s_andn2_b32 {sreg}, s81, {sreg}")
    k.e(f"s_cbranch_scc1 {fail}")

def spin(k, off, T, sleep=0):
    L = k.newlabel("L_spin")
    k.e("s_mov_b32 s90, 0")
    k.label(L)
    k.e(f"ds_read_b32 v{VT}, v{VC} offset:{off}")
    k.e("s_add_u32 s90, s90, 1")
    k.e(f"s_cmp_gt_u32 s90, {SPIN_MAX*8}")
    k.e(f"s_cbranch_scc1 {L}_out")
    if sleep: k.e(f"s_sleep {sleep}")
    k.e("s_waitcnt lgkmcnt(0)")
    k.e(f"v_readfirstlane_b32 s91, v{VT}")
    chk(k, "s91", T, L)
    k.label(L + "_out")
    k.e("s_waitcnt lgkmcnt(0)")
    k.reset_ds()

def post(k, off, T):
    k.e(f"s_add_u32 s91, s82, {T}")
    k.e(f"v_mov_b32 v{VT+1}, s91")
    k.ds(f"ds_write_b8 v{VB_}, v{VT+1} offset:{off}")

def stats_ops(ST, XA, RSD, qscale=None):
    sv = []
    a = sv.append
    for t in range(1, 4):
        for q in range(4):
            a(f"v_add_f32 v{ST+q}, v{ST+q}, v{ST+4*t+q}")
    a(f"v_add_f32 v{ST}, v{ST}, v{ST+2}")
    a(f"v_add_f32 v{ST+1}, v{ST+1}, v{ST+3}")
    a(f"v_mov_b32 v{ST+2}, v{ST}")
    a(f"v_mov_b32 v{ST+3}, v{ST+1}")
    a("s_nop 1")
    a(f"v_permlane32_swap_b32 v{ST}, v{ST+2}")
    a(f"v_permlane32_swap_b32 v{ST+1}, v{ST+3}")
    a("s_nop 1")
    a(f"v_add_f32 v{ST}, v{ST}, v{ST+2}")
    a(f"v_add_f32 v{ST+1}, v{ST+1}, v{ST+3}")
    a(f"v_mul_f32 v{ST}, {f32bits(-1.0/640):#x}, v{ST}")
    a(f"v_mul_f32 v{ST+1}, {f32bits(1.0/640):#x}, v{ST+1}")
    a(f"v_fma_f32 v{ST+1}, -v{ST}, v{ST}, v{ST+1}")
    a(f"v_max_f32 v{ST+1}, 0, v{ST+1}")
    a(f"v_add_f32 v{ST+1}, {f32bits(1e-5):#x}, v{ST+1}")
    a(f"v_rsq_f32 v{RSD}, v{ST+1}")
    a(f"v_cvt_pk_bf16_f32 v{XA}, v{ST}, v{ST}")
    a(f"v_mul_f32 v{ST+1}, v{ST+1}, v{RSD}")
    a(f"v_mov_b32 v{RSD+1}, v{RSD}")
    a(f"v_and_b32 v{ST+2}, 0xffff0000, v{XA}")
    a(f"v_sub_f32 v{ST+2}, v{ST}, v{ST+2}")
    a(f"v_cvt_pk_bf16_f32 v{XA+1}, v{ST+2}, v{ST+1}")
    a(f"v_and_b32 v{ST+3}, 0xffff0000, v{XA+1}")
    a(f"v_sub_f32 v{ST+3}, v{ST+1}, v{ST+3}")
    a(f"v_mov_b32 v{XA+3}, 0")
    a(f"v_cvt_pk_bf16_f32 v{XA+2}, v{ST+3}, v{XA+3}")
    if qscale is not None:
        a(f"v_mul_f32 v{RSD+2}, {f32bits(qscale):#x}, v{RSD}")
        a(f"v_mul_f32 v{RSD+3}, {f32bits(qscale):#x}, v{RSD}")
    return sv

CC = math.log2(math.e) / math.sqrt(20.0)
TS = 5440
QX = 12 * TS
M1B = 20480
WOL = 61376
WOH = WOL + 4 * 5120
def wo_lds(s): return WOH + s*5120 if s < 16 else WOL + (s-16)*5120
M1_HEAD = 12
def m1_lds(s):
    if s < 12: return M1B + 3072*s
    if s < 38: return WOH + 3072*(s-12)
    return M1B + 3072*12 + 3072*(s-38)
R2 = 31
def _slot_free(sl):
    lo, hi = sl*5120, sl*5120 + 5120
    ov = [b for b in range(41) if m1_lds(b) < hi and m1_lds(b) + 3072 > lo]
    return max(ov) if ov else -1
SLOTS = sorted(range(R2), key=lambda sl: (_slot_free(sl), sl))
def m2_lds(s): return SLOTS[s % R2] * 5120
X2B = 27 * 5120
assert all(SLOTS.index(sl) + R2 >= 48 for sl in range(27, 31)), SLOTS
LQ, LO, L1, L2 = 1, 12, 17, 28
CQ, CO, COX, C1, C2, C2X = 1, 12, 17, 18, 29, 41

def mainloop(k, cold, NT, nsteps, wread, xop, lda, nlda, pre, ring, land_T, cons_T, first_c0, hook, ACC, WF):
    e = k.e
    SET = 4 * NT
    def wset(s): return WF + SET * (s % 3)
    def check(c):
        T = land_T(c)
        if T is None: return
        lf = k.newlabel("L_lw"); lb = lf + "_b"
        k.wait(ds=("ctl", c))
        e(f"v_readfirstlane_b32 s91, v{VT+2}")
        chk(k, "s91", T, lf)
        k.label(lb)
        cold.label(lf)
        spin(cold, C_LAND - CTL, T)
        cold.e(f"s_branch {lb}")
    def ctlread(c):
        if land_T(c) is None: return
        k.ds(f"ds_read_b32 v{VT+2}, v{VC} offset:{C_LAND-CTL}", ("ctl", c))
    nl = 0
    k.reset_ds()
    ctlread(0)
    while nl < min(pre, nlda):
        lda(nl); nl += 1
    check(0)
    for s in range(2):
        for cb in range(NT): wread(s, cb, wset(s) + 4*cb)
    for s in range(nsteps):
        t = s + 2
        for cb in range(NT):
            if cb == 0 and s < nlda:
                k.wait(vm=("a", s), ds=("w", s, cb))
            else:
                k.wait(ds=("w", s, cb))
            acc = ACC + 16 * cb
            csrc = "0" if (s == 0 and first_c0) else f"v[{acc}:{acc+15}]"
            e(f"v_mfma_f32_32x32x16_bf16 v[{acc}:{acc+15}], v[{wset(s)+4*cb}:{wset(s)+4*cb+3}], {xop(s)}, {csrc}")
            if t < nsteps:
                if cb == 0 and t % 4 == 0: check(t // 4)
                wread(t, cb, wset(t) + 4*cb)
                if cb == NT - 1 and (t % 4 == 3 or t == nsteps - 1):
                    post(k, C_CONS - CTL, cons_T(t // 4))
                if cb == 0 and (t + 1) % 4 == 0 and t + 1 < nsteps: ctlread((t + 1) // 4)
            if cb >= 1 and nl < nlda and nl < s + ring:
                lda(nl); nl += 1
            hook(s, cb, nl >= nlda)
    assert nl == nlda

def gemm1_main(k, cold, pfx, NT, lds_of, thr, first_skip, qscale, land_T, cons_T):
    e = k.e
    ST = 16; XA = 32; RSD = 36; WF = 40; ACC = 88; AR = 152; R = 24
    KS = 40
    e("s_lshl_b32 s24, s16, 2")
    e("s_add_u32 s24, s24, s18")
    e("s_mul_i32 s25, s24, 40960")
    e("s_lshl_b32 s26, s24, 12")
    e(f"s_add_u32 s26, s26, {L_STA}")
    e("s_lshl_b32 s27, s24, 8")
    e(f"s_add_u32 s27, s27, {FL + F_X}")
    for b in range(3):
        e(f"v_add_u32 v{4+b}, {b*0xf000}, v2")
    if NT == 4:
        e("v_and_b32 v12, 31, v1")
        e("v_bfe_u32 v13, v1, 3, 1")
        e("v_and_b32 v14, 3, v1")
        e("v_lshl_add_u32 v13, v13, 2, v14")
        e("v_add_u32 v13, 16, v13")
        e("v_cmp_gt_u32 vcc, 16, v12")
        e("v_lshrrev_b32 v14, 5, v1")
        e("v_mul_u32_u24 v14, 384, v14")
        e("v_cndmask_b32 v12, v13, v12, vcc")
        e("v_lshl_add_u32 v12, v12, 4, v14")
        for b in range(3):
            e(f"v_add_u32 v{7+b}, {3072 + b*0xf000}, v12")
    if first_skip:
        lsk = k.newlabel("L_nopoll")
        e("s_cmp_eq_u32 s23, 0")
        e(f"s_cbranch_scc1 {lsk}")
    poll(k, "s27", 16, 10, thr)
    if first_skip:
        k.label(lsk)
    stamp(k, {"q": 1, "1": 9}[pfx])
    def areg(s): return AR + 4 * (s % R)
    def lda(s):
        a = areg(s)
        k.vmem(f"buffer_load_dwordx4 v[{a}:{a+3}], v2, s[4:7], s25 offen offset:{1024*(s%4)} sc1", ("a", s))
        if s % 4 == 3: e("s_add_u32 s25, s25, 4096")
    def wread(s, cb, dst):
        b, r = divmod(lds_of(s), 0xf000)
        if NT == 4 and cb == 3:
            k.ds(f"ds_read_b128 v[{dst}:{dst+3}], v{7+b} offset:{r}", ("w", s, cb))
        else:
            k.ds(f"ds_read_b128 v[{dst}:{dst+3}], v{4+b} offset:{r + cb*1024}", ("w", s, cb))
    def xop(s):
        return f"v[{areg(s)}:{areg(s)+3}]" if s < KS else f"v[{XA}:{XA+3}]"
    sv = stats_ops(ST, XA, RSD, qscale)
    state = {"st": 0}
    def hook(s, cb, done):
        if cb == 0 and s >= 8 and state["st"] < 4:
            t = state["st"]; state["st"] += 1
            k.vmem(f"buffer_load_dwordx4 v[{ST+4*t}:{ST+4*t+3}], v2, s[4:7], s26 offen offset:{1024*t} sc1", "st")
        if s == 30 and cb == 0: k.wait(vm="st")
        if s >= 30 and sv:
            for _ in range(2):
                if sv: e(sv.pop(0))
    mainloop(k, cold, NT, KS + 1, wread, xop, lda, KS, OPT.get("pre1", 10), R, land_T, cons_T, True, hook, ACC, WF)
    assert not sv
    return dict(WF=WF, ACC=ACC, RSD=RSD)

def gemm2(k, cold, pfx, KS, lds_of, xch, a_off, a_rbs, flag_off, nflags, flag_kw_bytes, bias, pubval,
          final_branch, land_T, cons_T, cons_x, pre_wait):
    e = k.e
    XR = 16; BR = 28; WF = 40; ACC = 76; AR = 124; R = 28
    NT = 3
    T0, T1, T2 = ACC, ACC + 16, ACC + 32
    e("s_and_b32 s28, s18, 1")
    e("s_lshr_b32 s29, s18, 1")
    e("s_lshl_b32 s24, s19, 1")
    e("s_add_u32 s24, s24, s28")
    e("s_mul_i32 s26, s24, 40960")
    e("s_mul_i32 s30, s20, 5120")
    e("s_add_u32 s26, s26, s30")
    e("s_add_u32 s33, s26, 4096")
    e("s_lshl_b32 s30, s29, 11")
    e("s_add_u32 s32, s26, s30")
    e("v_lshrrev_b32 v12, 5, v1")
    e("v_lshlrev_b32 v13, 4, v12")
    e("s_mul_i32 s34, s20, 160")
    e("s_add_u32 s35, s34, 128")
    e("s_lshl_b32 s30, s29, 6")
    e("s_add_u32 s34, s34, s30")
    e(f"buffer_load_dwordx4 v[{XR}:{XR+3}], v2, s[4:7], s32 offen sc1")
    e(f"buffer_load_dwordx4 v[{XR+4}:{XR+7}], v2, s[4:7], s32 offen offset:1024 sc1")
    e(f"buffer_load_dwordx4 v[{XR+8}:{XR+11}], v2, s[4:7], s33 offen sc1")
    if bias:
        e(f"buffer_load_dwordx4 v[{BR}:{BR+3}], v13, s[12:15], s34 offen")
        e(f"buffer_load_dwordx4 v[{BR+4}:{BR+7}], v13, s[12:15], s34 offen offset:32")
        e(f"buffer_load_dwordx4 v[{BR+8}:{BR+11}], v13, s[12:15], s35 offen")
    e(f"s_mul_i32 s25, s24, {a_rbs}")
    e(f"s_mul_i32 s30, s29, {KS*1024}")
    e("s_add_u32 s25, s25, s30")
    e(f"s_add_u32 s25, s25, {a_off}")
    e("s_lshl_b32 s27, s24, 8")
    e(f"s_mul_i32 s30, s29, {flag_kw_bytes}")
    e("s_add_u32 s27, s27, s30")
    e(f"s_add_u32 s27, s27, {FL + flag_off}")
    e("s_mul_i32 s30, s29, 2560")
    e("v_add_u32 v4, s30, v2")
    e("v_and_b32 v7, 15, v1")
    e("v_lshlrev_b32 v7, 4, v7")
    e("v_lshl_add_u32 v7, v12, 8, v7")
    e("s_add_u32 s30, s30, 2048")
    e("v_add_u32 v7, s30, v7")
    e("v_add_u32 v5, 0xf000, v4")
    e("v_add_u32 v6, 0x1e000, v4")
    e("v_add_u32 v8, 0xf000, v7")
    e("v_add_u32 v9, 0x1e000, v7")
    e("s_lshl_b32 s38, s24, 12")
    e("s_lshl_b32 s36, s20, 9")
    e("s_add_u32 s38, s38, s36")
    e("s_lshl_b32 s36, s29, 3")
    e("s_add_u32 s38, s38, s36")
    e(f"s_add_u32 s38, s38, {L_STA}")
    e("s_lshl_b32 s36, s20, 1")
    e("s_add_u32 s36, s36, s29")
    e("s_lshl_b32 s36, s36, 2")
    e("s_lshl_b32 s37, s24, 8")
    e("s_add_u32 s36, s36, s37")
    e(f"s_add_u32 s36, s36, {FL + F_X}")
    e("s_mul_i32 s30, s28, 10240")
    e(f"s_add_u32 s30, s30, {xch}")
    e("v_add_u32 v14, s30, v2")
    for r in range(48):
        e(f"v_mov_b32 v{ACC+r}, 0")
    e("s_waitcnt vmcnt(0)")
    def init_unit(u, dst):
        for q in range(4):
            e(f"v_lshlrev_b32 v{dst+2*q}, 16, v{XR+4*u+q}")
            e(f"v_and_b32 v{dst+2*q+1}, 0xffff0000, v{XR+4*u+q}")
            if bias:
                e(f"v_lshlrev_b32 v10, 16, v{BR+4*u+q}")
                e(f"v_and_b32 v11, 0xffff0000, v{BR+4*u+q}")
                e(f"v_pk_add_f32 v[{dst+2*q}:{dst+2*q+1}], v[{dst+2*q}:{dst+2*q+1}], v[10:11]")
    li1 = k.newlabel("L_i1"); lij = k.newlabel("L_ij")
    e("s_cmp_eq_u32 s29, 1")
    e(f"s_cbranch_scc1 {li1}")
    init_unit(0, T0); init_unit(1, T0 + 8); init_unit(2, T2)
    e(f"s_branch {lij}")
    k.label(li1)
    init_unit(0, T1); init_unit(1, T1 + 8)
    k.label(lij)
    poll(k, "s27", nflags, 10, "s85")
    stamp(k, {"o": 6, "2": 12}[pfx])
    def areg(s): return AR + 4 * (s % R)
    def lda(s):
        a = areg(s)
        k.vmem(f"buffer_load_dwordx4 v[{a}:{a+3}], v2, s[4:7], s25 offen offset:{1024*(s%4)} sc1", ("a", s))
        if s % 4 == 3: e("s_add_u32 s25, s25, 4096")
        if pre_wait and s == OPT.get("pre2", 10) - 1: pre_wait()
    def wread(s, cb, dst):
        b, off = divmod(lds_of(s), 0xf000)
        if cb < 2:
            k.ds(f"ds_read_b128 v[{dst}:{dst+3}], v{4+b} offset:{off + cb*1024}", ("w", s, cb))
        else:
            k.ds(f"ds_read_b128 v[{dst}:{dst+3}], v{7+b} offset:{off}", ("w", s, cb))
    def hook2(s, cb, d):
        if pfx != "2": return
        if s == KS - 3 and cb == 1:
            k.ds(f"ds_read_b32 v{VT+3}, v{VC} offset:{C_CONS-CTL}", "xc")
        if s == KS - 2 and cb == 2:
            T = C2 + max(SLOTS.index(sl) for sl in range(27, 31)) // 4
            lf = k.newlabel("L_xc"); lb = lf + "_b"
            k.wait(ds="xc")
            e(f"v_readfirstlane_b32 s91, v{VT+3}")
            chk(k, "s91", T, lf)
            k.label(lb)
            cold.label(lf)
            spin(cold, C_CONS - CTL, T)
            cold.e(f"s_branch {lb}")
    mainloop(k, cold, NT, KS, wread, lambda s: f"v[{areg(s)}:{areg(s)+3}]", lda, KS, OPT.get("pre2", 10), R, land_T, cons_T, False,
             hook2, ACC, WF)
    stamp(k, {"o": 7, "2": 13}[pfx])
    e(f"s_add_u32 s91, s82, {cons_x}")
    e(f"v_mov_b32 v{VT+1}, s91")
    e("s_xor_b32 s30, s18, 2")
    e("s_lshl_b32 s30, s30, 3")
    e("v_mov_b32 v10, 0x3f803f80")
    e("v_mov_b32 v12, 0")
    e("s_nop 7")
    RX = AR
    lk1 = k.newlabel("L_kw1"); lj = k.newlabel("L_join")
    def xwait():
        L = k.newlabel("L_xw")
        e(f"ds_write_b8 v{VB_}, v{VT+1} offset:{C_XF-CTL}")
        e("s_mov_b32 s90, 0")
        k.label(L)
        e(f"ds_read_b32 v{VT}, v{VC} offset:{C_XF-CTL}")
        e("s_add_u32 s90, s90, 1")
        e(f"s_cmp_gt_u32 s90, {SPIN_MAX*8}")
        e(f"s_cbranch_scc1 {L}_out")
        e("s_waitcnt lgkmcnt(0)")
        e(f"v_readfirstlane_b32 s37, v{VT}")
        e("s_lshr_b32 s37, s37, s30")
        e("s_and_b32 s37, s37, 0xff")
        e("s_cmp_lt_u32 s37, s91")
        e(f"s_cbranch_scc1 {L}")
        k.label(L + "_out")
    e("s_cmp_eq_u32 s29, 1")
    e(f"s_cbranch_scc1 {lk1}")
    for q in range(4):
        e(f"ds_write_b128 v14, v[{T1+4*q}:{T1+4*q+3}] offset:{6144+1024*q}")
    xwait()
    for q in range(6):
        e(f"ds_read_b128 v[{RX+4*q}:{RX+4*q+3}], v14 offset:{1024*q}")
    e(f"ds_write_b8 v{VB_}, v{VT+1} offset:{C_CONS-CTL}")
    for q in range(6):
        e(f"s_waitcnt lgkmcnt({6-q})")
        src = T0 + 4*q if q < 4 else T2 + 4*(q-4)
        for j in (0, 2):
            e(f"v_pk_add_f32 v[{RX+4*q+j}:{RX+4*q+j+1}], v[{RX+4*q+j}:{RX+4*q+j+1}], v[{src+j}:{src+j+1}]")
        for j in (0, 2):
            e(f"v_cvt_pk_bf16_f32 v{WF+2*q+j//2}, v{RX+4*q+j}, v{RX+4*q+j+1}")
    e(f"s_branch {lj}")
    k.label(lk1)
    for q in range(4):
        e(f"ds_write_b128 v14, v[{T0+4*q}:{T0+4*q+3}] offset:{1024*q}")
    for q in range(2):
        e(f"ds_write_b128 v14, v[{T2+4*q}:{T2+4*q+3}] offset:{4096+1024*q}")
    xwait()
    for q in range(4):
        e(f"ds_read_b128 v[{RX+4*q}:{RX+4*q+3}], v14 offset:{6144+1024*q}")
    e(f"ds_write_b8 v{VB_}, v{VT+1} offset:{C_CONS-CTL}")
    for q in range(4):
        e(f"v_mov_b32 v{WF+8+q}, 0")
    for q in range(4):
        e(f"s_waitcnt lgkmcnt({4-q})")
        src = T1 + 4*q
        for j in (0, 2):
            e(f"v_pk_add_f32 v[{RX+4*q+j}:{RX+4*q+j+1}], v[{RX+4*q+j}:{RX+4*q+j+1}], v[{src+j}:{src+j+1}]")
        for j in (0, 2):
            e(f"v_cvt_pk_bf16_f32 v{WF+2*q+j//2}, v{RX+4*q+j}, v{RX+4*q+j+1}")
    k.label(lj)
    if final_branch:
        lf = k.newlabel("L_final")
        e("s_cmp_eq_u32 s23, 1")
        e(f"s_cbranch_scc1 {lf}")
        c = cold
        c.label(lf)
        c.e("v_and_b32 v10, 31, v1")
        c.e("v_mul_u32_u24 v10, 1280, v10")
        c.e("v_add_u32 v13, v13, v10")
        c.e("s_mul_i32 s30, s24, 40960")
        c.e("s_add_u32 s34, s34, s30")
        c.e("s_add_u32 s35, s35, s30")
        for u in range(3):
            o = WF + 4*u
            so, off = ("s34", 32*u) if u < 2 else ("s35", 0)
            if u == 2:
                c.e("s_cmp_eq_u32 s29, 1")
                c.e("s_cbranch_scc1 L_mega_fin")
            c.e(f"buffer_store_dwordx4 v[{o}:{o+3}], v13, s[8:11], {so} offen offset:{off}")
        c.e("s_branch L_mega_fin")
    def fin(kk, sc):
        for u in range(3):
            o = WF + 4*u
            so, off = ("s32", 1024*u) if u < 2 else ("s33", 0)
            if u == 2:
                lsk = kk.newlabel("L_sk3")
                kk.e("s_cmp_eq_u32 s29, 1")
                kk.e(f"s_cbranch_scc1 {lsk}")
            kk.e(f"buffer_store_dwordx4 v[{o}:{o+3}], v2, s[4:7], {so} offen offset:{off}{sc}")
        kk.label(lsk)
        kk.e("v_mov_b32 v13, 0")
        for r in range(12):
            kk.e(f"v_dot2_f32_bf16 v12, v{WF+r}, v10, v12")
            kk.e(f"v_dot2_f32_bf16 v13, v{WF+r}, v{WF+r}, v13")
        kk.e("s_nop 2")
        kk.e("v_mov_b32 v10, v12")
        kk.e("v_mov_b32 v11, v13")
        kk.e("s_nop 1")
        kk.e("v_permlane32_swap_b32 v12, v10")
        kk.e("v_permlane32_swap_b32 v13, v11")
        kk.e("s_nop 1")
        kk.e("v_add_f32 v12, v12, v10")
        kk.e("v_add_f32 v13, v13, v11")
        kk.e("s_mov_b32 exec_hi, 0")
        kk.e(f"buffer_store_dwordx2 v[12:13], v2, s[4:7], s38 offen{sc}")
        kk.e("s_mov_b32 exec_hi, -1")
        publish(kk, "s36", 10, sc, pubval)
    dual(k, cold, fin)


def att_addr(k, ee, vq, vk, vv0, vv1):
    e = k.e
    e("v_lshrrev_b32 v16, 5, v1")
    e("v_and_b32 v18, 0x13, v1")
    e("v_bfe_u32 v19, v1, 2, 1")
    e("v_lshl_add_u32 v18, v19, 3, v18")
    e("v_bfe_u32 v19, v1, 3, 1")
    e("v_lshl_add_u32 v18, v19, 2, v18")
    e("v_lshlrev_b32 v18, 4, v18")
    e(f"v_add_u32 v19, {3*ee}, v16")
    e("v_and_b32 v20, 3, v19")
    e("v_lshlrev_b32 v20, 6, v20")
    e("v_xor_b32 v20, v20, v18")
    e(f"v_lshl_add_u32 {vk}, v19, 9, v20")
    e(f"v_add_u32 {vk}, s29, {vk}")
    e("v_and_b32 v18, 1, v1")
    e(f"v_add_u32 v18, {5+3*ee}, v18")
    e("v_bfe_u32 v19, v1, 1, 1")
    e("v_lshlrev_b32 v19, 3, v19")
    e("v_lshl_add_u32 v19, v18, 9, v19")
    e("v_and_b32 v20, 0x13, v1")
    e("v_cmp_eq_u32 vcc, 16, v20")
    e(f"v_mov_b32 v21, {3584 + 8*ee}")
    e("v_mov_b32 v17, 7")
    e("v_cndmask_b32 v19, v19, v21, vcc")
    e("v_cndmask_b32 v18, v18, v17, vcc")
    e("v_and_b32 v18, 3, v18")
    e("v_lshlrev_b32 v18, 6, v18")
    e("v_cmp_lt_u32 vcc, 16, v20")
    e("v_bfe_u32 v20, v1, 2, 2")
    e("v_lshl_add_u32 v20, v16, 3, v20")
    e("v_lshlrev_b32 v20, 4, v20")
    e("v_xor_b32 v21, v20, v18")
    e(f"v_add_u32 {vv0}, v21, v19")
    e("v_xor_b32 v21, 64, v21")
    e(f"v_add_u32 {vv1}, v21, v19")
    e("v_mov_b32 v21, 5136")
    e(f"v_cndmask_b32 {vv0}, {vv0}, v21, vcc")
    e(f"v_cndmask_b32 {vv1}, {vv1}, v21, vcc")
    e(f"v_add_u32 {vv0}, s29, {vv0}")
    e(f"v_add_u32 {vv1}, s29, {vv1}")

def attention(a, cold):
    e = a.e
    VK = [4, 5]; VK2 = 6; VQ = 7; VV = [[8, 9], [30, 31]]
    MK = [10, 11, 12, 13, 14, 15, 253, 254]
    Q1, Q2, MX, ONE = 16, 20, 24, 28
    KF, SB = 32, 104
    OSH = 0
    S0, S8 = SB, SB + 128
    e(f"s_mul_i32 s29, s18, {TS}")
    for ee in range(2):
        att_addr(a, ee, None, f"v{VK[ee]}", f"v{VV[ee][0]}", f"v{VV[ee][1]}")
    e("v_and_b32 v18, 0x13, v1")
    e("v_bfe_u32 v19, v1, 2, 1")
    e("v_lshl_add_u32 v18, v19, 3, v18")
    e("v_bfe_u32 v19, v1, 3, 1")
    e("v_lshl_add_u32 v18, v19, 2, v18")
    e("v_lshlrev_b32 v18, 4, v18")
    e("v_xor_b32 v18, 0x80, v18")
    e("v_add_u32 v18, 1024, v18")
    e("v_mov_b32 v19, 5120")
    e("s_mov_b32 s32, -1")
    e("s_mov_b32 s33, 0")
    e(f"v_cndmask_b32 v{VK2}, v19, v18, s[32:33]")
    e(f"v_add_u32 v{VK2}, s29, v{VK2}")
    e("s_mul_i32 s30, s18, 3072")
    e(f"s_add_u32 s30, s30, {QX}")
    e(f"v_add_u32 v{VQ}, s30, v2")
    e(f"v_mov_b32 v{ONE}, 0x3f803f80")
    e(f"v_mov_b32 v{ONE+1}, 0x3f803f80")
    e("v_mov_b32 v25, 0xffff")
    for j in range(8):
        e(f"v_cndmask_b32 v{MK[j]}, 0, v25, s[{40+4*j}:{41+4*j}]")
        e(f"v_cndmask_b32 v{MK[j]}, v{MK[j]}, -1, s[{42+4*j}:{43+4*j}]")
    e("s_lshl_b32 s26, s16, 2")
    e("s_add_u32 s26, s26, s18")
    e("s_lshl_b32 s31, s26, 8")
    e("s_lshl_b32 s27, s17, 2")
    e("s_add_u32 s31, s31, s27")
    e(f"s_add_u32 s31, s31, {FL + F_O}")
    e("s_mul_i32 s26, s26, 40960")
    e("s_mul_i32 s27, s17, 2560")
    e("s_add_u32 s26, s26, s27")
    e(f"s_add_u32 s26, s26, {L_O}")
    spin(a, C_LOC - CTL, 1)
    spin(a, C_HK - CTL, 1)
    stamp(a, 4)
    a.ds(f"ds_read_b32 v25, v{VC} offset:{C_MODE-CTL}", "mode")
    order = [8, 0, 1, 2, 3, 4, 5, 6, 7]
    for ee in range(2):
        vk, (v0_, v1_) = VK[ee], VV[ee]
        a.ds(f"ds_read_b128 v[{Q1}:{Q1+3}], v{VQ} offset:{1536*ee}", "q1")
        a.ds(f"ds_read_b128 v[{Q2}:{Q2+3}], v{VQ} offset:1024", "q2")
        def kread(kt):
            a.ds(f"ds_read_b128 v[{KF+8*kt}:{KF+8*kt+3}], v{vk} offset:{kt*TS}", ("k", kt, 0))
            a.ds(f"ds_read_b128 v[{KF+8*kt+4}:{KF+8*kt+7}], v{VK2} offset:{kt*TS}", ("k", kt, 1))
        def vreads(kt):
            out = []
            for G in range(2):
                d = KF + 8*kt + 4*G
                out.append((f"ds_read_b64_tr_b16 v[{d}:{d+1}], v{v0_} offset:{kt*TS + G*256}", ("v", kt)))
                out.append((f"ds_read_b64_tr_b16 v[{d+2}:{d+3}], v{v1_} offset:{kt*TS + G*256}", ("v", kt)))
            return out
        AH = 4
        for n in range(AH): kread(order[n])
        a.wait(ds="q2")
        if ee == 0:
            e("v_readfirstlane_b32 s22, v25")
        e("v_mov_b32 v24, 0x3f80")
        if ee == 0:
            e(f"v_cndmask_b32 v{Q2}, v24, v{Q2}, s[32:33]")
            e(f"v_cndmask_b32 v{Q2+1}, 0, v{Q2+1}, s[32:33]")
            e(f"v_mov_b32 v{Q2+2}, 0")
            e(f"v_mov_b32 v{Q2+3}, 0")
        else:
            e(f"v_cndmask_b32 v{Q2}, v24, 0, s[32:33]")
            e(f"v_mov_b32 v{Q2+1}, 0")
            e(f"v_cndmask_b32 v{Q2+2}, 0, v{Q2+2}, s[32:33]")
            e(f"v_cndmask_b32 v{Q2+3}, 0, v{Q2+3}, s[32:33]")
        started = [False] * 4
        def maxops(base):
            ops = []
            for r in range(0, 16, 2):
                ci = (r // 2) % 4
                if not started[ci]:
                    started[ci] = True
                    ops.append(f"v_max_f32_e64 v{MX+ci}, v{base+r}, v{base+r+1}")
                else:
                    ops.append(f"v_max3_f32 v{MX+ci}, v{MX+ci}, v{base+r}, v{base+r+1}")
            return ops
        vq = []
        for n, kt in enumerate(order):
            sreg = SB + 16*kt
            a.wait(ds=("k", kt, 0))
            e(f"v_mfma_f32_32x32x16_bf16 v[{sreg}:{sreg+15}], v[{KF+8*kt}:{KF+8*kt+3}], v[{Q1}:{Q1+3}], 0")
            for _ in range(5):
                if vq and vq[0][0] <= n: e(vq.pop(0)[1])
            a.wait(ds=("k", kt, 1))
            e(f"v_mfma_f32_32x32x16_bf16 v[{sreg}:{sreg+15}], v[{KF+8*kt+4}:{KF+8*kt+7}], v[{Q2}:{Q2+3}], v[{sreg}:{sreg+15}]")
            if n + AH < 9: kread(order[n + AH])
            for _ in range(5):
                if vq and vq[0][0] <= n: e(vq.pop(0)[1])
            if n == 1:
                vq += [(4, f"v_cndmask_b32 v{S8+r}, v{S0+r}, v{S8+r}, s[{40+2*r}:{41+2*r}]") for r in range(16)]
                vq += [(4, op) for op in maxops(S8)]
            elif n >= 2:
                vq += [(n + 2, op) for op in maxops(sreg)]
        if ee == 0: spin(a, C_HV - CTL, 1)
        vr_ = []
        for kt in [1, 2, 3, 4, 5, 6, 7, 8, 0]: vr_ += vreads(kt)
        cnt = 0
        while vq or vr_:
            if vr_:
                if cnt == 12:
                    e("s_waitcnt lgkmcnt(6)"); cnt = 6
                ins, tag = vr_.pop(0); a.ds(ins, tag); cnt += 1
            if vq: e(vq.pop(0)[1])
        if ee == 1: post(a, C_RD - CTL, 1)
        e(f"v_max_f32 v{MX}, v{MX}, v{MX+1}")
        e(f"v_max3_f32 v{MX}, v{MX}, v{MX+2}, v{MX+3}")
        e(f"v_mov_b32 v{MX+1}, v{MX}")
        e("s_nop 1")
        e(f"v_permlane32_swap_b32 v{MX}, v{MX+1}")
        e("s_nop 0")
        e(f"v_max_f32 v{MX}, v{MX}, v{MX+1}")
        t0, t1, t2 = Q1, Q1 + 1, Q1 + 2
        e(f"v_sub_f32 v{t0}, 0, v{MX}")
        e(f"v_and_b32 v{t1}, 0xffff0000, v{t0}")
        e(f"v_sub_f32 v{t0}, v{t0}, v{t1}")
        e(f"v_and_b32 v{t2}, 0xffff0000, v{t0}")
        e(f"v_sub_f32 v{t0}, v{t0}, v{t2}")
        e(f"v_lshrrev_b32 v{t1}, 16, v{t1}")
        e(f"v_or_b32 v{t1}, v{t1}, v{t2}")
        e(f"v_lshrrev_b32 v{t0}, 16, v{t0}")
        e(f"v_cndmask_b32 v{MX}, 0, v{t1}, s[32:33]")
        e(f"v_cndmask_b32 v{MX+1}, 0, v{t0}, s[32:33]")
        e(f"v_mov_b32 v{MX+2}, 0")
        e(f"v_mov_b32 v{MX+3}, 0")
        def submfma(kt):
            sr_ = SB + 16*kt
            return f"v_mfma_f32_32x32x16_bf16 v[{sr_}:{sr_+15}], v[{ONE}:{ONE+3}], v[{MX}:{MX+3}], v[{sr_}:{sr_+15}]"
        e("s_nop 1")
        e(submfma(1))
        e(submfma(2))
        e("s_waitcnt lgkmcnt(0)")
        a.reset_ds()
        if PROF and ee == 0:
            a.e("s_memtime s[92:93]"); a.e("s_waitcnt lgkmcnt(0)"); a.e("s_lshr_b32 s94, s95, 4"); a.e("s_add_u32 s94, s94, 44"); a.e("s_mov_b32 m0, s94"); a.e("s_nop 0"); a.e("v_writelane_b32 v3, s92, m0")
        e("s_nop 9")
        OACC = S0
        P0 = 16
        first = True
        pending = []
        a.lines.append(".p2align 3")
        for kt in range(1, 9):
            sr_ = SB + 16*kt
            seq = []
            for r in range(0, 16, 2):
                seq.append([f"v_exp_f32 v{sr_+r}, v{sr_+r}", f"v_exp_f32 v{sr_+r+1}, v{sr_+r+1}"])
                if r >= 2: seq.append([f"v_cvt_pk_bf16_f32 v{sr_+r//2-1}, v{sr_+r-2}, v{sr_+r-1}"])
            for i, grp in enumerate(seq):
                for ins in grp: e(ins)
                if i == 0 and kt > 1: e(prev_tail)
                if pending and i in (2, 7):
                    e(pending.pop(0))
                if i == 11 and kt + 2 <= 8: e(submfma(kt + 2))
            prev_tail = f"v_cvt_pk_bf16_f32 v{sr_+7}, v{sr_+14}, v{sr_+15}"
            if kt < 8:
                for G in range(2):
                    csrc = "0" if first else f"v[{OACC}:{OACC+15}]"
                    first = False
                    pending.append(f"v_mfma_f32_32x32x16_bf16 v[{OACC}:{OACC+15}], v[{KF+8*kt+4*G}:{KF+8*kt+4*G+3}], v[{sr_+4*G}:{sr_+4*G+3}], {csrc}")
        assert not pending
        e("s_nop 0")
        e(prev_tail)
        for G in range(2):
            for j in range(4*G, 4*G + 4):
                e(f"v_and_b32 v{P0+j}, v{S8+j}, v{MK[j]}")
            for j in range(4*G, 4*G + 4):
                e(f"v_xor_b32 v{S8+j}, v{S8+j}, v{P0+j}")
            e(f"v_mfma_f32_32x32x16_bf16 v[{OACC}:{OACC+15}], v[{KF+64+4*G}:{KF+64+4*G+3}], v[{P0+4*G}:{P0+4*G+3}], v[{OACC}:{OACC+15}]")
            e("s_nop 0")
            e(f"v_mfma_f32_32x32x16_bf16 v[{OACC}:{OACC+15}], v[{KF+4*G}:{KF+4*G+3}], v[{S8+4*G}:{S8+4*G+3}], v[{OACC}:{OACC+15}]")
        e("s_nop 7")
        e("s_nop 3")
        e(f"v_rcp_f32 v24, v{OACC+12}")
        e("s_nop 0")
        for r in range(12):
            e(f"v_mul_f32 v{OACC+r}, v{OACC+r}, v24")
        OD = SB + 16*7
        for r in range(0, 8, 2):
            e(f"v_cvt_pk_bf16_f32 v{OD+r//2}, v{OACC+r}, v{OACC+r+1}")
        if PROF and ee == 1:
            a.e("s_memtime s[92:93]"); a.e("s_waitcnt lgkmcnt(0)"); a.e("s_lshr_b32 s94, s95, 4"); a.e("s_add_u32 s94, s94, 40"); a.e("s_mov_b32 m0, s94"); a.e("s_nop 0"); a.e("v_writelane_b32 v3, s92, m0")
        if PROF and ee == 0:
            a.e("s_memtime s[92:93]"); a.e("s_waitcnt lgkmcnt(0)"); a.e("s_lshr_b32 s94, s95, 4"); a.e("s_add_u32 s94, s94, 42"); a.e("s_mov_b32 m0, s94"); a.e("s_nop 0"); a.e("v_writelane_b32 v3, s92, m0")
        if ee == 0:
            e(f"v_cvt_pk_bf16_f32 v0, v{OACC+8}, v{OACC+9}")
            e(f"v_cvt_pk_bf16_f32 v255, v{OACC+10}, v{OACC+11}")
            dual(a, cold, lambda kk, sc: kk.e(f"buffer_store_dwordx4 v[{OD}:{OD+3}], v2, s[4:7], s26 offen{sc}"))
        else:
            e(f"v_mov_b32 v{OD+4}, v0")
            e(f"v_mov_b32 v{OD+5}, v255")
            e(f"v_cvt_pk_bf16_f32 v{OD+6}, v{OACC+8}, v{OACC+9}")
            e(f"v_cvt_pk_bf16_f32 v{OD+7}, v{OACC+10}, v{OACC+11}")
            def aep(kk, sc):
                kk.e(f"buffer_store_dwordx4 v[{OD}:{OD+3}], v2, s[4:7], s26 offen offset:1536{sc}")
                kk.e("s_mov_b32 exec_hi, 0")
                kk.e(f"buffer_store_dwordx4 v[{OD+4}:{OD+7}], v2, s[4:7], s26 offen offset:1024{sc}")
                kk.e("s_mov_b32 exec_hi, -1")
                publish(kk, "s31", 10, sc, "s85")
            dual(a, cold, aep)

def gen_mega():
    c = St("cw"); h = St("hw"); cold = St("cold"); top = St("top")
    e = top.e
    if PROF:
        e("s_memrealtime s[88:89]")
    e(f"s_load_dwordx4 s[24:27], s[0:1], {KA_B2}")
    e(f"s_load_dwordx2 s[28:29], s[0:1], {KA_WS}")
    e("s_cmp_ge_u32 s2, 256")
    e("s_cbranch_scc1 L_mega_end")
    e("s_and_b32 s30, s2, 7")
    e("s_lshr_b32 s31, s2, 3")
    e("s_and_b32 s17, s31, 15")
    e("s_lshl_b32 s16, s30, 1")
    e("s_lshr_b32 s83, s31, 4")
    e("s_add_u32 s16, s16, s83")
    e("s_and_b32 s20, s31, 7")
    e("s_lshl_b32 s19, s30, 2")
    e("s_lshr_b32 s84, s31, 3")
    e("s_add_u32 s19, s19, s84")
    e("v_lshrrev_b32 v10, 6, v0")
    e("v_and_b32 v1, 63, v0")
    e("v_readfirstlane_b32 s18, v10")
    e("v_lshlrev_b32 v2, 4, v1")
    e("v_mov_b32 v3, 0")
    e("s_mov_b32 s21, 0")
    e("s_mov_b32 s22, 0")
    e("s_mov_b32 s23, 0")
    e("s_mov_b32 s95, 0")
    e(f"s_mov_b32 s72, {FL}")
    e("s_and_b32 s73, s18, 3")
    e("s_mov_b32 s85, 1")
    e("s_mov_b32 s86, 0")
    e("s_mov_b32 s87, 1")
    e("s_mov_b32 s80, 0")
    e("s_mov_b32 s81, 0x80808080")
    e("s_mov_b32 s82, 0x80")
    e(f"v_mov_b32 v{VC}, {CTL}")
    e(f"v_mov_b32 v{VB_}, 0x7fffffff")
    e(f"s_add_u32 s32, s73, {CTL}")
    e(f"v_writelane_b32 v{VB_}, s32, 0")
    for q in range(4): e(f"v_mov_b32 v{12+q}, s81")
    e(f"ds_write_b128 v{VC}, v[12:15]")
    e(f"ds_write_b128 v{VC}, v[12:15] offset:16")
    e(f"ds_write_b128 v{VC}, v[12:15] offset:32")
    e(f"s_mul_i32 s74, s17, {WTQ_S}")
    e(f"s_add_u32 s74, s74, {WTQ}")
    e(f"s_mul_i32 s75, s20, {WTO_S}")
    e(f"s_add_u32 s75, s75, {WTO}")
    e(f"s_mul_i32 s76, s17, {WT1_S}")
    e(f"s_add_u32 s76, s76, {WT1}")
    e(f"s_mul_i32 s77, s20, {WT2_S}")
    e(f"s_add_u32 s77, s77, {WT2}")
    e("s_lshl_b32 s78, s30, 7")
    e(f"s_add_u32 s78, s78, {FL + F_PUR}")
    e("v_lshrrev_b32 v12, 5, v1")
    e("v_and_b32 v13, 31, v1")
    e("v_lshlrev_b32 v10, 3, v12")
    e("v_sub_u32 v10, v13, v10")
    for rho in range(16):
        G, j = divmod(rho, 8)
        e(f"v_cmp_le_i32_e64 s[{40+2*rho}:{41+2*rho}], {16*G+j}, v10")
    e("s_waitcnt lgkmcnt(0)")
    e("s_barrier")
    srd(top, 4, 28, WS_END if not PROF else 0x10000000)
    srd(top, 8, 26, S_*D_*2)
    srd(top, 12, 24, D_*2)
    e("s_cmp_ge_u32 s18, 4")
    e("s_cbranch_scc1 L_hw_start")

    def next_layer(e):
        e(f"s_add_u32 s21, s21, {LS}")
        e(f"s_add_u32 s72, s72, {FLS}")
        e("s_add_u32 s23, s23, 1")
        e("s_add_u32 s95, s95, 16")
        e(f"s_add_u32 s80, s80, {SEQ_L*REP:#x}")
        e(f"s_add_u32 s82, s82, {SEQ_L}")
        e("s_add_u32 s85, s85, 1")
        e("s_add_u32 s86, s86, 2")
        e("s_add_u32 s87, s87, 2")

    e = c.e
    e("s_setprio 1")
    c.label("L_cw_layer")
    stamp(c, 0)
    r = gemm1_main(c, cold, "q", 4, lambda s: s*3840, "s86", True, CC, lambda cn: LQ + cn, lambda cn: CQ + cn)
    WF, ACC, RSD = r["WF"], r["ACC"], r["RSD"]
    stamp(c, 2)
    e("v_lshrrev_b32 v6, 5, v1")
    e("v_lshlrev_b32 v6, 6, v6")
    e("v_xor_b32 v6, v6, v2")
    e("v_xor_b32 v7, 0x80, v6")
    e("s_add_u32 s31, s18, 8")
    e(f"s_mul_i32 s31, s31, {TS}")
    e("v_add_u32 v8, s31, v6")
    e("v_add_u32 v9, s31, v7")
    e("s_mul_i32 s28, s18, 3072")
    e(f"s_add_u32 s28, s28, {QX}")
    e("v_add_u32 v12, s28, v2")
    e("s_lshl_b32 s28, s24, 4")
    e("s_add_u32 s28, s28, s17")
    e("s_lshl_b32 s30, s28, 7")
    e("s_add_u32 s30, s30, s72")
    e(f"s_add_u32 s30, s30, {F_KV}")
    e("s_mul_i32 s28, s28, 5120")
    e("s_add_u32 s28, s28, s21")
    e(f"s_add_u32 s28, s28, {L_KV}")
    e("s_add_u32 s29, s28, 4096")
    for p in range(8):
        cb, G = divmod(p, 2)
        a0 = ACC + 16*cb + 8*G
        o = WF + 4*p
        rs = RSD if p < 5 else RSD + 2
        for j in range(0, 8, 2):
            e(f"v_pk_mul_f32 v[{a0+j}:{a0+j+1}], v[{a0+j}:{a0+j+1}], v[{rs}:{rs+1}]")
        for j in range(0, 8, 2):
            e(f"v_cvt_pk_bf16_f32 v{o+j//2}, v{a0+j}, v{a0+j+1}")
        if p < 5:
            so, off = ("s28", 1024*p) if p < 4 else ("s29", 0)
            e(f"buffer_store_dwordx4 v[{o}:{o+3}], v{6 + p%2}, s[4:7], {so} offen offset:{off} sc1")
    spin(c, C_CONS - CTL, CQ + 10)
    for p in range(8):
        o = WF + 4*p
        if p < 5:
            e(f"ds_write_b128 v{8 + p%2}, v[{o}:{o+3}] offset:{1024*p}")
        else:
            e(f"ds_write_b128 v12, v[{o}:{o+3}] offset:{1024*(p-5)}")
    e("v_mov_b32 v12, s31")
    for q in range(4):
        e(f"v_mov_b32 v{16+q}, 0")
        e(f"v_mov_b32 v{20+q}, 0x3f803f80")
    e("s_mov_b64 exec, 1")
    e("ds_write_b128 v12, v[16:19] offset:5120")
    e("ds_write_b128 v12, v[20:23] offset:5136")
    e("ds_write_b128 v12, v[20:23] offset:5392")
    e("s_mov_b64 exec, -1")
    post(c, C_LOC - CTL, 1)
    publish(c, "s30", 10, " sc1", 1)
    stamp(c, 3)
    attention(c, cold)
    stamp(c, 5)
    gemm2(c, cold, "o", 20, wo_lds, 0, L_O, 40960, F_O, 8, 32, False, "s87", False,
          lambda cn: LO + cn, lambda cn: CO + cn, COX, None)
    stamp(c, 8)
    r = gemm1_main(c, cold, "1", 3, m1_lds, "s87", False, None, lambda cn: L1 + cn, lambda cn: C1 + cn)
    stamp(c, 10)
    e(f"s_mul_i32 s28, s24, {192*512}")
    e("s_mul_i32 s29, s17, 6144")
    e("s_add_u32 s28, s28, s29")
    e(f"s_add_u32 s28, s28, {L_H}")
    e("s_add_u32 s29, s28, 4096")
    e("s_lshl_b32 s30, s24, 8")
    e("s_lshl_b32 s31, s17, 2")
    e("s_add_u32 s30, s30, s31")
    e(f"s_add_u32 s30, s30, {FL + F_H}")
    e("s_nop 1")
    def m1ep(kk, sc):
        for p in range(6):
            cb, G = divmod(p, 2)
            a0 = ACC + 16*cb + 8*G
            o = WF + 4*p
            for j in range(8):
                kk.e(f"v_max_f32 v{a0+j}, 0, v{a0+j}")
            for j in range(0, 8, 2):
                kk.e(f"v_pk_mul_f32 v[{a0+j}:{a0+j+1}], v[{a0+j}:{a0+j+1}], v[{RSD}:{RSD+1}]")
            for j in range(0, 8, 2):
                kk.e(f"v_pk_mul_f32 v[{a0+j}:{a0+j+1}], v[{a0+j}:{a0+j+1}], v[{a0+j}:{a0+j+1}]")
            for j in range(0, 8, 2):
                kk.e(f"v_cvt_pk_bf16_f32 v{o+j//2}, v{a0+j}, v{a0+j+1}")
            so, off = ("s28", 1024*p) if p < 4 else ("s29", 1024*(p-4))
            kk.e(f"buffer_store_dwordx4 v[{o}:{o+3}], v2, s[4:7], {so} offen offset:{off}{sc}")
        publish(kk, "s30", 10, sc, "s85")
    dual(c, cold, m1ep)
    stamp(c, 11)
    gemm2(c, cold, "2", 48, m2_lds, X2B, L_H, 192*512, F_H, 8, 32, True, 2,
          True, lambda cn: L2 + cn, lambda cn: C2 + cn, C2X, None)
    stamp(c, 14)
    next_layer(e)
    e("s_branch L_cw_layer")

    e = h.e
    QR, W1R = 8, 164
    h.label("L_hw_start")
    e("s_getreg_b32 s24, hwreg(HW_REG_XCC_ID)")
    e("s_and_b32 s24, s24, 15")
    e("s_mul_i32 s25, s24, s24")
    e("s_lshl_b32 s25, s25, 16")
    e("s_lshl_b32 s24, s24, 8")
    e("s_add_u32 s24, s24, s25")
    e("s_add_u32 s79, s24, 1")
    e("v_lshlrev_b32 v4, 6, v1")
    e("s_lshl_b32 s71, s73, 10")
    known = {"c": -10**9}
    def need_cons(T, flush=None):
        if T is None or T <= known["c"]: return
        known["c"] = T
        if flush is None:
            spin(h, C_CONS - CTL, T, sleep=1)
            return
        lf = h.newlabel("L_cw"); lb = lf + "_b"
        e(f"ds_read_b32 v{VT}, v{VC} offset:{C_CONS-CTL}")
        e("s_waitcnt lgkmcnt(0)")
        e(f"v_readfirstlane_b32 s91, v{VT}")
        chk(h, "s91", T, lf)
        h.label(lb)
        cold.label(lf)
        cold.e("s_waitcnt vmcnt(0)")
        post(cold, C_LAND - CTL, flush)
        spin(cold, C_CONS - CTL, T, sleep=1)
        cold.e(f"s_branch {lb}")
    def q_round_need(cn):
        return (min(41, 4*cn + 4) * 3840 + 4095) // 4096 - 1
    def q_write(r):
        b, off = divmod(r * 4096, 0xf000)
        e(f"ds_write_b128 v{5+b}, v[{QR+4*r}:{QR+4*r+3}] offset:{off}")
        for cn in range(11):
            if q_round_need(cn) == r and (cn == 10 or q_round_need(cn + 1) != r):
                post(h, C_LAND - CTL, LQ + cn)
    def q_addrs():
        e("v_add_u32 v5, s71, v2")
        e("v_add_u32 v6, 0xf000, v5")
        e("v_add_u32 v7, 0x1e000, v5")
    def touch(src_s, off):
        e(f"s_add_u32 s24, {src_s}, {off}")
        h.vmem("buffer_load_dword v0, v4, s[4:7], s24 offen", "t")
    stamp(h, 0)
    q_addrs()
    e("s_add_u32 s26, s74, s71")
    LAG = OPT.get("qlag", 8)
    for r in range(39 + LAG):
        if r < 39:
            h.vmem(f"buffer_load_dwordx4 v[{QR+4*r}:{QR+4*r+3}], v2, s[4:7], s26 offen", ("q", r))
            e("s_add_u32 s26, s26, 4096")
        if r == 4:
            e("s_cmp_lg_u32 s18, 4")
            e("s_cbranch_scc1 L_hw_nopur")
            e("v_mov_b32 v253, 0")
            e("v_mov_b32 v254, s79")
            e("s_mov_b64 exec, 1")
            e("buffer_atomic_add v254, v253, s[4:7], s78 offen sc1")
            e("s_mov_b64 exec, -1")
            e("s_lshr_b32 s24, s16, 1")
            e("s_lshl_b32 s24, s24, 11")
            e(f"s_add_u32 s24, s24, {FL}")
            e("s_mov_b32 exec_hi, 0")
            e("buffer_load_dword v0, v4, s[4:7], s24 offen")
            e("s_mov_b32 exec_hi, -1")
            h.label("L_hw_nopur")
        if r >= LAG:
            h.wait(vm=("q", r - LAG))
            q_write(r - LAG)
    e(f"s_mul_i32 s26, s73, 3072")
    e("s_add_u32 s70, s76, s26")
    e(f"s_add_u32 s70, s70, {12*3072}")
    def w1r_load(c_):
        e(f"s_add_u32 s26, s70, {c_*4*3072}")
        for u in range(3):
            r = W1R + 12*c_ + 4*u
            h.vmem(f"buffer_load_dwordx4 v[{r}:{r+3}], v2, s[4:7], s26 offen offset:{1024*u}", "w1r")
    N1 = OPT.get("n1", 3)
    for c_ in range(N1): w1r_load(c_)
    L = "L_hw_pur"
    e("v_mov_b32 v253, 0")
    e("s_mov_b32 s90, 0")
    h.label(L)
    e("buffer_load_dword v254, v253, s[4:7], s78 offen sc1")
    e("s_add_u32 s90, s90, 1")
    e(f"s_cmp_gt_u32 s90, {SPIN_MAX}")
    e(f"s_cbranch_scc1 {L}_out")
    e("s_waitcnt vmcnt(0)")
    e("v_readfirstlane_b32 s24, v254")
    e("s_and_b32 s25, s24, 0xff")
    e("s_cmp_lt_u32 s25, 32")
    e(f"s_cbranch_scc1 {L}")
    h.label(L + "_out")
    e("s_lshl_b32 s25, s79, 5")
    e("s_cmp_lg_u32 s24, s25")
    e("s_cselect_b32 s22, 1, 0")
    if FORCE_SLOW: e("s_mov_b32 s22, 1")
    e("v_mov_b32 v253, s22")
    e(f"ds_write_b32 v{VC}, v253 offset:{C_MODE-CTL}")
    e("s_branch L_hw_common")
    h.label("L_hw_layer1")
    stamp(h, 0)
    q_addrs()
    need_cons(C2 + 11 - SEQ_L)
    for r in range(39):
        if (r + 1) * 4096 > X2B: need_cons(C2X - SEQ_L)
        q_write(r)
        if r % 8 == 7: e("s_waitcnt lgkmcnt(4)")
    stamp(h, 1)
    if OPT.get("touch", 1):
        h.reset_vm()
        need_cons(CQ + 1)
        e("s_mul_i32 s25, s84, 25600")
        e("s_add_u32 s25, s25, s75")
        e("s_lshl_b32 s26, s73, 12")
        e("s_add_u32 s25, s25, s26")
        touch("s25", 0)
        need_cons(CQ + 3)
        touch("s25", 16384)
        e("s_mul_i32 s25, s83, 18432")
        e("s_add_u32 s25, s25, s76")
        e("s_add_u32 s25, s25, s26")
        need_cons(CQ + 5)
        touch("s25", 0)
        e("s_mul_i32 s25, s84, 4096")
        e("s_add_u32 s25, s25, s77")
        e("s_lshl_b32 s26, s73, 14")
        e("s_add_u32 s25, s25, s26")
        need_cons(CQ + 6)
        touch("s25", 0)
    h.label("L_hw_common")
    known["c"] = min(known["c"], -10**9)
    h.reset_vm()
    stamp(h, 2)
    e("s_lshl_b32 s26, s73, 1")
    e("s_lshl_b32 s27, s16, 2")
    e("s_add_u32 s27, s27, s26")
    e("s_sub_i32 s27, s27, 8")
    e(f"s_mul_i32 s30, s26, {TS}")
    e(f"v_mul_u32_u24 v5, {TS}, v1")
    e("v_add_u32 v5, s30, v5")
    e("s_cmp_lt_i32 s27, 0")
    e("s_cselect_b32 s24, 0xf149, 0")
    e("v_mov_b32 v252, s24")
    e("v_mov_b32 v253, 0")
    e("v_mov_b32 v254, 0")
    e("v_mov_b32 v255, 0")
    e("v_mov_b32 v6, 0x3f803f80")
    e("v_mov_b32 v7, 0x3f803f80")
    need_cons(CQ + 10)
    e("s_mov_b64 exec, 3")
    e("ds_write_b128 v5, v[252:255] offset:5120")
    e("ds_write_b64 v5, v[6:7] offset:5136")
    e("ds_write_b64 v5, v[6:7] offset:5392")
    e("s_mov_b64 exec, -1")
    lneg = "L_hw_neg"; lhd = "L_hw_halo_done"
    e("s_cmp_lt_i32 s27, 0")
    e(f"s_cbranch_scc1 {lneg}")
    e("s_lshl_b32 s28, s27, 4")
    e("s_add_u32 s28, s28, s17")
    e("s_lshl_b32 s29, s28, 7")
    e("s_add_u32 s29, s29, s72")
    e(f"s_add_u32 s29, s29, {F_KV}")
    e("s_mul_i32 s28, s28, 5120")
    e("s_add_u32 s28, s28, s21")
    e(f"s_add_u32 s28, s28, {L_KV}")
    L = "L_hw_kvpoll"
    e("v_lshlrev_b32 v5, 11, v1")
    e("s_mov_b64 exec, 3")
    e("s_mov_b32 s90, 0")
    h.label(L)
    e("buffer_load_dword v6, v5, s[4:7], s29 offen sc1")
    e("s_add_u32 s90, s90, 1")
    e(f"s_cmp_gt_u32 s90, {SPIN_MAX}")
    e(f"s_cbranch_scc1 {L}_out")
    e("s_waitcnt vmcnt(0)")
    e("v_cmp_eq_u32 vcc, 0, v6")
    e(f"s_cbranch_vccnz {L}")
    h.label(L + "_out")
    e("s_mov_b64 exec, -1")
    stamp(h, 3)
    for part in range(2):
        for n in range(2):
            e(f"s_add_u32 m0, s30, {n*TS + part*2560}")
            e(f"s_add_u32 s31, s28, {n*16*5120 + part*2560}")
            e("buffer_load_dwordx4 v2, s[4:7], s31 offen sc1 lds")
            e("buffer_load_dwordx4 v2, s[4:7], s31 offen offset:1024 sc1 lds")
            e("s_mov_b32 exec_hi, 0")
            e("buffer_load_dwordx4 v2, s[4:7], s31 offen offset:2048 sc1 lds")
            e("s_mov_b32 exec_hi, -1")
    e("s_waitcnt vmcnt(6)")
    post(h, C_HK - CTL, 1)
    e("s_waitcnt vmcnt(0)")
    post(h, C_HV - CTL, 1)
    e(f"s_branch {lhd}")
    h.label(lneg)
    e("v_add_u32 v5, s30, v2")
    e("v_mov_b32 v252, 0")
    for n in range(2):
        for u in range(5):
            e(f"ds_write_b128 v5, v[252:255] offset:{n*TS + 1024*u}")
    post(h, C_HK - CTL, 1)
    post(h, C_HV - CTL, 1)
    h.label(lhd)
    spin(h, C_HV - CTL, 1, sleep=1)
    stamp(h, 4)
    h.reset_vm()
    e("s_lshl_b32 s26, s16, 2")
    e("s_add_u32 s26, s26, s73")
    e("s_mul_i32 s24, s26, 40960")
    e("s_mul_i32 s25, s17, 2560")
    e("s_add_u32 s24, s24, s25")
    e(f"s_add_u32 s24, s24, {L_O}")
    e("s_mov_b32 exec_hi, 0xff")
    e("buffer_load_dword v0, v4, s[4:7], s24 offen")
    e("s_mov_b32 exec_hi, -1")
    e(f"s_mul_i32 s69, s26, {192*512}")
    e("s_mul_i32 s25, s17, 6144")
    e("s_add_u32 s69, s69, s25")
    e(f"s_add_u32 s69, s69, {L_H}")
    DEPTH = 2
    def stream(src, blk, chunks, nblk, ldsf, land0, consf, extra={}, preflush=False):
        e(f"s_mul_i32 s25, s73, {blk}")
        e(f"s_add_u32 s26, {src}, s25")
        pend = []
        for cn in chunks:
            b0 = 4 * cn
            nb = min(4, nblk - b0)
            need_cons(consf(cn), land0 + pend[-1] if pend else None)
            addrs = [ldsf(b0 + i) for i in range(nb)]
            lin = all(addrs[i] == addrs[0] + i*blk for i in range(nb))
            L = None
            if nb < 4:
                L = h.newlabel("L_nb")
                e(f"s_cmp_ge_u32 s73, {nb}")
                e(f"s_cbranch_scc1 {L}")
            if lin:
                e(f"s_add_u32 s27, s25, {addrs[0]}")
            else:
                e(f"s_mov_b32 s27, {addrs[0]}")
                for i in range(1, nb):
                    e(f"s_cmp_eq_u32 s73, {i}")
                    e(f"s_cselect_b32 s27, {addrs[i]}, s27")
            e("s_mov_b32 m0, s27")
            e(f"s_add_u32 s28, s26, {b0*blk}")
            nfull = blk // 1024
            for u in range(min(nfull, 4)):
                h.vmem(f"buffer_load_dwordx4 v2, s[4:7], s28 offen offset:{1024*u} lds", ("b", cn))
            if nfull == 5:
                e("s_add_u32 m0, s27, 4096")
                e("s_add_u32 s28, s28, 4096")
                h.vmem("buffer_load_dwordx4 v2, s[4:7], s28 offen lds", ("b", cn))
            if L: h.label(L)
            pend.append(cn)
            for tc in extra.get(cn, []): tc()
            if len(pend) >= DEPTH:
                d = pend.pop(0)
                if L: e("s_waitcnt vmcnt(0)")
                else: h.wait(vm=("b", d))
                post(h, C_LAND - CTL, land0 + d)
        return pend
    def flush(land0, pend):
        if pend:
            e("s_waitcnt vmcnt(0)")
            post(h, C_LAND - CTL, land0 + pend[-1])
        h.reset_vm()
    p = stream("s75", 5120, range(4), 20, wo_lds, LO, lambda cn: None)
    flush(LO, p)
    stamp(h, 5)
    e("s_cmp_lg_u32 s23, 0")
    e("s_cbranch_scc1 L_hw_now1r")
    for c_ in range(N1, 7): w1r_load(c_)
    h.label("L_hw_now1r")
    touch("s69", 0)
    e("s_mov_b32 exec_hi, 0")
    touch("s69", 4096)
    e("s_mov_b32 exec_hi, -1")
    if OPT.get("touch", 1):
        e("s_cmp_eq_u32 s23, 0")
        e("s_cbranch_scc1 L_hw_now2t")
        e("s_mul_i32 s25, s84, 4096")
        e("s_add_u32 s25, s25, s77")
        e("s_lshl_b32 s26, s73, 14")
        e("s_add_u32 s25, s25, s26")
        for n in range(1, 1 + OPT.get("w2t", 3)): touch("s25", n*65536)
        h.label("L_hw_now2t")
    h.reset_vm()
    spin(h, C_RD - CTL, 1, sleep=1)
    p = stream("s75", 5120, [4], 20, wo_lds, LO, lambda cn: None)
    flush(LO, p)
    p = stream("s76", 3072, range(3), 41, m1_lds, L1, lambda cn: None)
    flush(L1, p)
    stamp(h, 6)
    def cons_1(cn):
        ov = [b for b in range(20) for x in range(4*cn, min(41, 4*cn + 4)) if wo_lds(b) < m1_lds(x) + 3072 and wo_lds(b) + 5120 > m1_lds(x)]
        return CO + max(ov) // 4
    for cn in range(3, 10):
        need_cons(cons_1(cn))
        addrs = [m1_lds(4*cn + i) for i in range(4)]
        e(f"s_mov_b32 s27, {addrs[0]}")
        for i in range(1, 4):
            e(f"s_cmp_eq_u32 s73, {i}")
            e(f"s_cselect_b32 s27, {addrs[i]}, s27")
        e("v_add_u32 v5, s27, v2")
        for u in range(3):
            r = W1R + 12*(cn-3) + 4*u
            e(f"ds_write_b128 v5, v[{r}:{r+3}] offset:{1024*u}")
        post(h, C_LAND - CTL, L1 + cn)
        e("s_waitcnt lgkmcnt(4)")
    p = stream("s76", 3072, [10], 41, m1_lds, L1, cons_1)
    flush(L1, p)
    stamp(h, 7)
    def cons_2(cn):
        need = COX
        if OPT.get("m2start") is not None: need = max(need, C1 + OPT["m2start"])
        for b in range(4*cn, 4*cn + 4):
            if b >= R2:
                need = max(need, C2 + (b - R2) // 4)
            else:
                last = _slot_free(SLOTS[b])
                if last >= 0: need = max(need, C1 + last // 4)
        return need
    t2 = {}
    for cn, ix in ((0, 8), (3, 9), (6, 10), (7, 11), (9, 12)):
        t2.setdefault(cn, []).append(lambda ix=ix: stamp(h, ix))
    p = stream("s77", 5120, range(12), 48, m2_lds, L2, cons_2, t2)
    flush(L2, p)
    stamp(h, 13)
    next_layer(e)
    e("s_cmp_lt_u32 s23, 2")
    e("s_cbranch_scc1 L_hw_layer1")
    e("s_branch L_mega_fin")

    fin = St("fin")
    fin.label("L_mega_fin")
    if PROF:
        e = fin.e
        e("s_mov_b64 exec, -1")
        e("s_waitcnt vmcnt(0)")
        e("s_mov_b32 s95, 16")
        stamp(fin, 15)
        e("s_memrealtime s[92:93]")
        e("s_waitcnt lgkmcnt(0)")
        e("v_writelane_b32 v3, s88, 32")
        e("v_writelane_b32 v3, s92, 33")
        e("v_writelane_b32 v3, s22, 34")
        e("s_lshl_b32 s24, s2, 3")
        e("s_add_u32 s24, s24, s18")
        e("s_lshl_b32 s24, s24, 8")
        e(f"s_add_u32 s24, s24, {WS_PROF}")
        e("v_lshlrev_b32 v4, 2, v1")
        e("buffer_store_dword v3, v4, s[4:7], s24 offen")
    fin.label("L_mega_end")
    fin.e("s_endpgm")
    return top.text() + c.text() + h.text() + fin.text() + cold.text()

def main(out_path):
    ref = open(f"cdna_kernels/{NAME}.s.ref").read().split("\n")
    hdr = [l for l in ref if l.startswith(";") and "@launch" not in l and "Override launch" not in l and "grid=ceil" not in l]
    prep, prep_v = gen_prep()
    mega = gen_mega()
    out = "\n".join(hdr) + "\n"
    out += f"; @launch kernel=prep_kernel grid=({NPREP},1,1) block=(256,1,1) lds=16384\n"
    out += f"; @launch kernel=mega_kernel grid=(256,1,1) block=(512,1,1) lds=163840\n"
    out += '.amdgcn_target "amdgcn-amd-amdhsa--gfx950"\n.text\n'
    out += kernel_header("prep_kernel") + prep.text()
    out += ".p2align 8\nL_code_begin:\n"
    out += kernel_header("mega_kernel") + mega
    out += "L_code_end:\n"
    out += '.section .rodata,"a"\n'
    out += descriptor("prep_kernel", prep_v) + descriptor("mega_kernel", 256)
    open(out_path, "w").write(out)

if __name__ == "__main__":
    for a in sys.argv[2:]:
        if a == "prof": PROF = True
        if a == "slow": FORCE_SLOW = True
        if "=" in a: OPT[a.split("=")[0]] = int(a.split("=")[1])
    main(sys.argv[1] if len(sys.argv) > 1 else f"cdna_kernels/{NAME}.s")
```

```python
import sys, math, struct
from asmlib import *

NAME = "interleave_layers__sliding_block__dense_activation_squared_relu__prompt"
S_, D_, F_ = 2048, 640, 1536
KA_X, KA_WQKV, KA_WO, KA_W1, KA_B1, KA_W2, KA_B2, KA_OUT, KA_DBG, KA_WS = 0, 8, 16, 32, 40, 48, 56, 64, 72, 80
L_XA, L_O, L_H, L_STA, L_KV = 0, 0x280000, 0x500000, 0xB00000, 0xB40000
LS = 0x500000
WTQ = L_KV + 2 * LS;     WTQ_S = 38 * 4096
WT1 = WTQ + 16 * WTQ_S;  WT1_S = 40 * 3072
WTO = WT1 + 16 * WT1_S;  WTO_S = 102400
WT2 = WTO + 8 * WTO_S;   WT2_S = 245760
AUGP = WT2 + 8 * WT2_S + 0x10000
CSP = AUGP + 256 * 8192
FL = CSP + 2 * 16 * 40 * 512
F_O, F_X, F_H, F_EP, F_KV = 0, 128, 192, 0x6000, 0x8000
F_X0 = 0x28000
F_Q = F_X0 + 1024 * 128
F_J = F_Q + 1024 * 128
F_HI = F_J + 1024 * 128
WS_END = FL + F_HI + 256 * 128
WS_PROF = 0x4000000
PROF = False
OPT = {"w2t": 0, "ttime": 2, "late": 1, "early": 1, "n1": 2}
FORCE_SLOW = False
SPIN_MAX = 200000

def f32bits(x): return struct.unpack("<I", struct.pack("<f", x))[0]

def srd(k, d, lo, nbytes):
    k.e(f"s_mov_b32 s{d}, s{lo}")
    k.e(f"s_mov_b32 s{d+1}, s{lo+1}")
    k.e(f"s_mov_b32 s{d+2}, {nbytes}")
    k.e(f"s_mov_b32 s{d+3}, 0x00020000")

class St(K):
    def __init__(self, name):
        super().__init__(name)
        self.dq = []
    def reset_vm(self): self.vm = []
    def reset_ds(self): self.dq = []; self.dcov = 0
    def ds(self, s, tag=None):
        self.e(s); self.dq.append(tag)
    def n_ds(self, tag):
        last = max(i for i, t in enumerate(self.dq) if t == tag)
        n = len(self.dq) - 1 - last
        assert n <= 15
        return n
    def n_vm(self, tag):
        last = max(i for i, t in enumerate(self.vm) if t == tag)
        return min(63, len(self.vm) - 1 - last)
    def ensure(self, tag, upto_all=False):
        last = max(i for i, t in enumerate(self.dq) if t == tag)
        if last < getattr(self, "dcov", 0): return
        if upto_all: last = len(self.dq) - 1
        n = len(self.dq) - 1 - last
        assert n <= 15
        self.e(f"s_waitcnt lgkmcnt({n})")
        self.dcov = last + 1
    def wait(self, vm=None, ds=None):
        p = []
        if vm is not None: p.append(f"vmcnt({self.n_vm(vm)})")
        if ds is not None: p.append(f"lgkmcnt({self.n_ds(ds)})")
        self.e("s_waitcnt " + " ".join(p))

def stamp(k, idx):
    if not PROF: return
    k.e("s_memrealtime s[92:93]" if OPT.get("rt") else "s_memtime s[92:93]")
    k.e("s_waitcnt lgkmcnt(0)")
    k.e(f"s_add_u32 s94, s95, {idx}")
    k.e("s_mov_b32 m0, s94")
    k.e("s_nop 0")
    k.e("v_writelane_b32 v3, s92, m0")

def poll(k, soff, nflags, tmpv, thr, sh=2):
    e = k.e
    L = k.newlabel("L_poll")
    e(f"v_lshlrev_b32 v{tmpv}, {sh}, v1")
    e(f"s_mov_b64 exec, {(1 << nflags) - 1:#x}")
    e("s_mov_b32 s90, 0")
    k.label(L)
    e(f"buffer_load_dword v{tmpv+1}, v{tmpv}, s[4:7], {soff} offen sc1")
    e("s_add_u32 s90, s90, 1")
    e(f"s_cmp_gt_u32 s90, {SPIN_MAX}")
    e(f"s_cbranch_scc1 {L}_out")
    e("s_waitcnt vmcnt(0)")
    e(f"v_subrev_u32 v{tmpv+1}, {thr}, v{tmpv+1}")
    e(f"v_cmp_lt_u32 vcc, 15, v{tmpv+1}")
    e(f"s_cbranch_vccnz {L}")
    k.label(L + "_out")
    e("s_mov_b64 exec, -1")
    k.reset_vm()

def publish(k, soff, tmpv, sc, val):
    e = k.e
    e(f"v_mov_b32 v{tmpv}, 0")
    e(f"v_mov_b32 v{tmpv+1}, {val}")
    e("s_waitcnt vmcnt(0)")
    e("s_mov_b64 exec, 1")
    e(f"buffer_store_dword v{tmpv+1}, v{tmpv}, s[4:7], {soff} offen{sc}")
    e("s_mov_b64 exec, -1")
    k.reset_vm()

def dual(k, cold, fn):
    ls = k.newlabel("L_slow"); lb = k.newlabel("L_back")
    k.e("s_cmp_lg_u32 s22, 0")
    k.e(f"s_cbranch_scc1 {ls}")
    fn(k, "")
    k.label(lb)
    cold.label(ls)
    fn(cold, " sc1")
    cold.e(f"s_branch {lb}")

CTL = 163840 - 128
C_LAND, C_CONS, C_ATT, C_ATT2, C_XF, C_LOC, C_HK, C_HV, C_RD, C_MODE = CTL, CTL + 4, CTL + 8, CTL + 12, CTL + 16, CTL + 20, CTL + 24, CTL + 28, CTL + 32, CTL + 48
C_PQ, C_PG, C_GO = C_ATT, C_ATT2, CTL + 36
VC, VB_, VT = 248, 249, 250
PREV = -64

def cread(reg, off): return f"ds_read_u8 v{reg}, v{VC} offset:{64 + off}"
def chk(k, reg, T, fail):
    k.e(f"v_cmp_gt_u32 vcc, {T}, v{reg}")
    k.e(f"s_cbranch_vccnz {fail}")

def spin(k, off, T, sleep=0):
    L = k.newlabel("L_spin")
    k.e("s_mov_b32 s90, 0")
    k.label(L)
    k.e(cread(VT, off))
    k.e("s_add_u32 s90, s90, 1")
    k.e(f"s_cmp_gt_u32 s90, {SPIN_MAX*8}")
    k.e(f"s_cbranch_scc1 {L}_out")
    if sleep: k.e(f"s_sleep {sleep}")
    k.e("s_waitcnt lgkmcnt(0)")
    chk(k, VT, T, L)
    k.label(L + "_out")
    k.e("s_waitcnt lgkmcnt(0)")
    k.reset_ds()

def post(k, off, T):
    k.e(f"v_mov_b32 v{VT+1}, {T}")
    k.ds(f"ds_write_b8 v{VB_}, v{VT+1} offset:{64 + off}")

def stats_ops(ST, XA, RSD, qscale=None):
    sv = []
    a = sv.append
    S, Q = ST, ST + 1
    a(f"v_pk_add_f32 v[{ST}:{ST+1}], v[{ST}:{ST+1}], v[{ST+2}:{ST+3}]")
    a(f"v_pk_add_f32 v[{ST+4}:{ST+5}], v[{ST+4}:{ST+5}], v[{ST+6}:{ST+7}]")
    a(f"v_pk_add_f32 v[{ST+2}:{ST+3}], v[{ST}:{ST+1}], v[{ST+4}:{ST+5}]")
    a(f"v_pk_add_f32 v[{ST}:{ST+1}], v[{ST}:{ST+1}], v[{ST+4}:{ST+5}]")
    a(f"v_permlane32_swap_b32 v{ST}, v{ST+2}")
    a(f"v_permlane32_swap_b32 v{ST+1}, v{ST+3}")
    a(f"v_pk_add_f32 v[{ST}:{ST+1}], v[{ST}:{ST+1}], v[{ST+2}:{ST+3}]")
    a(f"v_mul_f32 v{S}, {f32bits(-1.0/640):#x}, v{S}")
    a(f"v_mul_f32 v{Q}, {f32bits(1.0/640):#x}, v{Q}")
    a(f"v_fma_f32 v{Q}, -v{S}, v{S}, v{Q}")
    a(f"v_max_f32 v{Q}, 0, v{Q}")
    a(f"v_add_f32 v{Q}, {f32bits(1e-5):#x}, v{Q}")
    a(f"v_rsq_f32 v{RSD}, v{Q}")
    a(f"v_cvt_pk_bf16_f32 v{ST+4}, v{S}, v{S}")
    a(f"v_mul_f32 v{Q}, v{Q}, v{RSD}")
    a(f"v_mov_b32 v{RSD+1}, v{RSD}")
    a(f"v_and_b32 v{ST+2}, 0xffff0000, v{ST+4}")
    a(f"v_permlane16_swap_b32 v{RSD}, v{RSD+1}")
    a(f"v_sub_f32 v{ST+2}, v{S}, v{ST+2}")
    a(f"v_cvt_pk_bf16_f32 v{ST+5}, v{ST+2}, v{Q}")
    a(f"v_and_b32 v{ST+3}, 0xffff0000, v{ST+5}")
    a(f"v_sub_f32 v{ST+3}, v{Q}, v{ST+3}")
    a(f"v_lshrrev_b32 v{ST+6}, 16, v{ST+3}")
    for m in range(2):
        mk = ("s[36:37]", "s[34:35]")[m]
        for q in range(3): a(f"v_cndmask_b32 v{XA+4*m+q}, 0, v{ST+4+q}, {mk}")
        a(f"v_mov_b32 v{XA+4*m+3}, 0")
    if qscale is not None:
        for m in range(2):
            a(f"v_mul_f32 v{RSD+2+m}, {f32bits(qscale):#x}, v{RSD+m}")
        for m in range(2):
            a(f"v_cndmask_b32 v{RSD+4+m}, v{RSD+2+m}, v{RSD+m}, s[38:39]")
    return sv

CC = math.log2(math.e) / math.sqrt(20.0)
TSV = 2848
TSK = 2576
KB = 12 * TSV
QSTEP = 7680
QAUG = 20 * QSTEP
WOH = CTL - 18 * 5120
def wo_lds(b): return WOH + b*5120 if b < 18 else WOH - 10240 + (b-18)*5120
def m1_lds(b):
    if b < 8: return KB + 3072*b
    if b < 12: return 20480 + 3072*(b-8)
    return WOH + 3072*(b-12)
assert KB + 12*TSK <= WOH and KB + 8*3072 <= WOH - 10240 and 20480 + 4*3072 <= KB and m1_lds(40) + 3072 <= CTL
R2 = 15
def _slot_free(sl):
    lo, hi = sl*10240, sl*10240 + 10240
    ov = [b for b in range(41) if m1_lds(b) < hi and m1_lds(b) + 3072 > lo]
    return max(ov) if ov else -1
SLOTS = sorted(range(R2), key=lambda sl: (_slot_free(sl), sl))
def m2_lds(b): return SLOTS[(b >> 1) % R2] * 10240 + (b & 1) * 5120
X2S = (13, 14)
X2B = X2S[0] * 10240
assert all(SLOTS.index(sl) + R2 >= 24 for sl in X2S), SLOTS
LQ, LO, L1, L2 = 1, 12, 17, 28
CQ, CO, COX, C1, C2, C2X = 1, 12, 17, 18, 29, 41
MF16 = "v_mfma_f32_16x16x32_bf16"

def soff_table(k, base_s, n):
    for i in range(n):
        k.e(f"s_add_u32 s{40+i}, {base_s}, {4096*i}")

def mainloop(k, cold, NT, nsteps, wread, xop, lda, nlda, pre, ring, land_T, cons_T, c0, events, opt, opt_from, ACC, WF):
    e = k.e
    LA = 10; RW = 11; WG = {8: 4, 6: 3, 5: 5}[NT]
    nops = nsteps * NT
    CH = 2 * NT
    def wreg(n): return WF + 4 * (n % RW)
    def cmp_(c):
        k.ensure(("ctl", c))
        e(f"v_cmp_gt_u32 vcc, {land_T(c)}, v{VT+2}")
    def check(c, full=True):
        T = land_T(c)
        lf = k.newlabel("L_lw"); lb = lf + "_b"
        if full: cmp_(c)
        e(f"s_cbranch_vccnz {lf}")
        k.label(lb)
        cold.label(lf)
        spin(cold, C_LAND - CTL, T)
        cold.e(f"s_branch {lb}")
    def ctlread(c): k.ds(cread(VT + 2, C_LAND - CTL), ("ctl", c))
    ev = {n: list(v) for n, v in events.items()}
    def busy(n): return bool(ev.get(n)) or (n + 1) % WG == 0 or (n + 1) % NT == 0
    def place(n, f, lo, hi):
        cands = sorted(range(max(lo, 0), min(hi, nops - 1) + 1), key=lambda x: (busy(x), abs(x - n)))
        ev.setdefault(cands[0], []).append(f)
        return cands[0]
    pre_ev = []
    nch = (nops + CH - 1) // CH
    for c in range(1, nch):
        dl = c * CH - LA - 1
        if dl < 0:
            pre_ev.append(c); continue
        if dl < 2:
            place(dl, lambda c=c: check(c), dl, dl); pre_ev.append(-c); continue
        p = place(dl, lambda c=c: check(c, False), dl - 1, dl)
        p = place(p - 1, lambda c=c: cmp_(c), p - 2, p - 1)
        CD = OPT.get("cd", 7)
        if p - CD < 0: pre_ev.append(-c)
        else: place(p - CD, lambda c=c: ctlread(c), p - CD, p - CD + 1)
    for c in range(nch):
        t = min((c + 1) * CH, nops) - 1 - LA
        t = max(t, 0)
        p = place(t + 1, lambda c=c: k.ds(f"ds_write_b8 v{VB_}, v{VT+1} offset:{64 + C_CONS - CTL}"), t + 1 if t + 1 > 0 else 1, t + 4)
        place(p - 1, lambda c=c: e(f"v_mov_b32 v{VT+1}, {cons_T(c)}"), max(p - 3, 0), p - 1)
    for i in range(2 * pre, nlda):
        s = i // 2 - pre
        n = s * NT + (1 if i % 2 == 0 else NT // 2 + 1)
        assert pre < ring
        place(n, lambda i=i: lda(i), s * NT + (0 if i % 2 == 0 else NT // 2), s * NT + (NT // 2 - 1 if i % 2 == 0 else NT - 1))
    k.reset_ds()
    ctlread(0)
    for i in range(min(2 * pre, nlda)): lda(i)
    check(0)
    for c in pre_ev:
        if c > 0:
            ctlread(c); check(c)
    for c in pre_ev:
        if c < 0: ctlread(-c)
    for n in range(LA): wread(n // NT, n % NT, wreg(n), ("w", n))
    for n in range(nops):
        s, T = divmod(n, NT)
        w = []
        if T == 0 and 2*s < nlda: w.append(f"vmcnt({k.n_vm(('a', 2*s + 1))})")
        if n % WG == 0:
            tag = ("w", min(n + WG - 1, nops - 1))
            last = max(i for i, t in enumerate(k.dq) if t == tag)
            if last >= k.dcov:
                cnt = len(k.dq) - 1 - last
                assert cnt <= 15
                w.append(f"lgkmcnt({cnt})"); k.dcov = last + 1
        if w: e("s_waitcnt " + " ".join(w))
        for m in range(2):
            acc = ACC + 8*T + 4*m
            csrc = "0" if (s == 0 and c0[m]) else f"v[{acc}:{acc+3}]"
            e(f"{MF16} v[{acc}:{acc+3}], v[{wreg(n)}:{wreg(n)+3}], {xop(s, m)}, {csrc}")
            t = n + LA
            if m == 0 and t < nops:
                wread(t // NT, t % NT, wreg(t), ("w", t))
        for f in ev.get(n, []): f()
        if opt and n >= opt_from and (not busy(n) or len(opt) > (nops - NT - 2 - n) // 2):
            e(opt.pop(0))
        if n == nops - NT - 2: assert not opt, len(opt)

def gemm1_main(k, cold, pfx, thr, qscale, land_T, cons_T):
    e = k.e
    NT = 8 if pfx == "q" else 6
    ST = 16; XA = 32; RSD = 40; WF = 48; ACC = 92; AR = 156; R = 11
    KS = 20
    e("s_lshl_b32 s24, s16, 2")
    e("s_add_u32 s24, s24, s18")
    e("s_mul_i32 s25, s24, 40960")
    e("s_lshl_b32 s26, s24, 11")
    e(f"s_add_u32 s26, s26, {L_STA}")
    e("s_lshl_b32 s27, s24, 8")
    e(f"s_add_u32 s27, s27, {FL + F_X}")
    soff_table(k, "s25", 10)
    e("s_mov_b32 s34, 0xffff0000")
    e("s_mov_b32 s35, 0")
    e("s_mov_b32 s36, 0xffff")
    e("s_mov_b32 s37, 0")
    e("s_mov_b32 s38, -1")
    e("s_mov_b32 s39, 0")
    for b in range(3):
        e(f"v_add_u32 v{4+b}, {b*0xf000}, v2")
    e("v_and_b32 v48, 15, v1")
    if pfx == "q":
        e("v_subrev_u32 v49, 4, v48")
        e("v_cmp_gt_u32 vcc, 12, v48")
        e("v_lshrrev_b32 v50, 4, v1")
        e("v_mul_u32_u24 v50, 192, v50")
        e("v_cndmask_b32 v49, v49, v48, vcc")
        e("v_lshl_add_u32 v49, v49, 4, v50")
        for b in range(3):
            e(f"v_add_u32 v{7+b}, {6144 + b*0xf000}, v49")
    e("v_lshlrev_b32 v46, 4, v48")
    e(f"v_add_u32 v46, {QAUG if pfx == 'q' else m1_lds(40)}, v46")
    if pfx == "q":
        e("s_lshl_b32 s28, s24, 11")
        e(f"s_add_u32 s28, s28, {FL + F_X0}")
        e("s_cmp_eq_u32 s23, 0")
        e("s_cselect_b32 s27, s28, s27")
        e("s_cselect_b32 s28, 7, 2")
        poll(k, "s27", 16, 10, thr, "s28")
    else:
        poll(k, "s27", 16, 10, thr)
    stamp(k, {"q": 1, "1": 9}[pfx])
    def areg(s, m): return AR + 8 * (s % R) + 4 * m
    def lda(i):
        s, m = divmod(i, 2)
        a = areg(s, m)
        k.vmem(f"buffer_load_dwordx4 v[{a}:{a+3}], v0, s[4:7], s{40+s//2} offen offset:{2048*(s%2) + 256*m} sc1", ("a", i))
    QPOS = {0: 0, 1: 1, 2: 2, 3: 3, 6: 4, 7: 5}
    def wread(s, T, dst, tag):
        if s == KS:
            k.ds(f"ds_read_b128 v[{dst}:{dst+3}], v46 offset:{256*T}", tag)
        elif pfx == "q":
            b, r = divmod(s * QSTEP, 0xf000)
            if T in (4, 5): k.ds(f"ds_read_b128 v[{dst}:{dst+3}], v{7+b} offset:{r + 768*(T-4)}", tag)
            else: k.ds(f"ds_read_b128 v[{dst}:{dst+3}], v{4+b} offset:{r + 1024*QPOS[T]}", tag)
        else:
            b, r = divmod(m1_lds(2*s + T // 3), 0xf000)
            k.ds(f"ds_read_b128 v[{dst}:{dst+3}], v{4+b} offset:{r + 1024*(T % 3)}", tag)
    def xop(s, m):
        a = areg(s, m) if s < KS else XA + 4*m
        return f"v[{a}:{a+3}]"
    sv = stats_ops(ST, XA, RSD, qscale)
    JS, JF = OPT.get("jst", 1), OPT.get("jfl", 10)
    def jhook(s):
        if True:
            if s == JS: assert ("a", 2*JF) not in k.vm
            lf = k.newlabel("L_js"); lb = lf + "_b"
            e("s_cmp_lt_u32 s101, 864")
            e(f"s_cbranch_scc1 {lf}")
            k.label(lb)
            cold.label(lf)
            if s != JF:
                for hs in range(2):
                    for p in range(3):
                        d = 16 + 12*hs + 4*p
                        if p < 2: cold.e(f"buffer_store_dwordx4 v[{d}:{d+3}], v47, s[4:7], s55 offen offset:{2048*p + 512*hs} sc1")
                        else: cold.e(f"buffer_store_dwordx4 v[{d}:{d+3}], v15, s[4:7], s55 offen offset:{512*hs} sc1")
                cold.e("s_cmp_ge_u32 s101, 320")
                cold.e(f"s_cbranch_scc1 {lb}")
                cold.e("buffer_store_dword v12, v14, s[4:7], s62 offen sc1")
                cold.e("s_add_u32 s62, s62, 10240")
                cold.e("buffer_store_dword v13, v14, s[4:7], s62 offen sc1")
            else:
                cold.e("v_mov_b32 v10, 0")
                cold.e("v_mov_b32 v11, s85")
                cold.e("s_mov_b64 exec, 1")
                cold.e("buffer_store_dword v11, v10, s[4:7], s100 offen sc1")
                cold.e("s_mov_b64 exec, -1")
                cold.e("s_mov_b32 s101, 9999")
            cold.e(f"s_branch {lb}")
    ev = {}
    if pfx == "q":
        ev[JS*NT] = [lambda: jhook(JS)]
        ev[JF*NT] = [lambda: jhook(JF)]
    for m in range(2):
        ev[(2+m)*NT + 2] = [lambda m=m: k.vmem(f"buffer_load_dwordx4 v[{ST+4*m}:{ST+4*m+3}], v2, s[4:7], s26 offen offset:{1024*m} sc1", "st")]
    ev[7*NT] = [lambda: k.wait(vm="st")]
    mainloop(k, cold, NT, KS + 1, wread, xop, lda, 2*KS, OPT.get("pre1", 6), R, land_T, cons_T, (True, True), ev, sv, 7*NT + 1, ACC, WF)
    return dict(WF=WF, ACC=ACC, RSD=RSD)

def scale_pack(k, ACC, P, m, rs, o, relu2=False):
    sel = "op_sel_hi:[1,0]" if m == 0 else "op_sel:[0,1] op_sel_hi:[1,1]"
    regs = [ACC + 16*P + 4*m, ACC + 16*P + 4*m + 2, ACC + 16*P + 8 + 4*m, ACC + 16*P + 8 + 4*m + 2]
    if relu2:
        for r in regs:
            k.e(f"v_max_f32 v{r}, 0, v{r}")
            k.e(f"v_max_f32 v{r+1}, 0, v{r+1}")
    for r in regs: k.e(f"v_pk_mul_f32 v[{r}:{r+1}], v[{r}:{r+1}], v[{rs}:{rs+1}] {sel}")
    if relu2:
        for r in regs: k.e(f"v_pk_mul_f32 v[{r}:{r+1}], v[{r}:{r+1}], v[{r}:{r+1}]")
    for i, r in enumerate(regs): k.e(f"v_cvt_pk_bf16_f32 v{o+i}, v{r}, v{r+1}")

def gemm2(k, cold, pfx, KS, lds_of, xch, a_off, a_rbs, flag_off, bias, pubval, final_branch, land_T, cons_T, cons_x):
    e = k.e
    XR = 16; BR = 28; WF = 48; ACC = 92; AR = 132; R = 14
    NT = 5
    e("s_and_b32 s28, s18, 1")
    e("s_lshr_b32 s29, s18, 1")
    e("s_lshl_b32 s24, s19, 1")
    e("s_add_u32 s24, s24, s28")
    e("s_mul_i32 s32, s24, 40960")
    e("s_mul_i32 s30, s20, 5120")
    e("s_add_u32 s32, s32, s30")
    e("s_add_u32 s33, s32, 4096")
    e("s_lshl_b32 s30, s29, 8")
    e("v_add_u32 v7, s30, v0")
    e("s_xor_b32 s31, s30, 256")
    e("v_add_u32 v8, s31, v0")
    e("v_lshrrev_b32 v12, 4, v1")
    e("v_and_b32 v13, 15, v1")
    e("v_lshrrev_b32 v9, 5, v1")
    e("v_lshlrev_b32 v9, 9, v9")
    e("v_lshl_add_u32 v9, v13, 4, v9")
    e("v_and_b32 v14, 1, v12")
    e("v_lshl_add_u32 v9, v14, 3, v9")
    e("v_add_u32 v9, s30, v9")
    e(f"buffer_load_dwordx4 v[{XR}:{XR+3}], v7, s[4:7], s32 offen sc1")
    e(f"buffer_load_dwordx4 v[{XR+4}:{XR+7}], v7, s[4:7], s32 offen offset:2048 sc1")
    e(f"buffer_load_dwordx2 v[{XR+8}:{XR+9}], v9, s[4:7], s33 offen sc1")
    e("v_lshlrev_b32 v40, 4, v12")
    e("v_lshlrev_b32 v41, 3, v12")
    e("s_mul_i32 s34, s20, 160")
    if bias:
        e(f"buffer_load_dwordx4 v[{BR}:{BR+3}], v40, s[12:15], s34 offen")
        e(f"buffer_load_dwordx4 v[{BR+4}:{BR+7}], v40, s[12:15], s34 offen offset:64")
        e(f"buffer_load_dwordx2 v[{BR+8}:{BR+9}], v41, s[12:15], s34 offen offset:128")
    e(f"s_mul_i32 s25, s24, {a_rbs}")
    e(f"s_mul_i32 s30, s29, {KS*2048}")
    e("s_add_u32 s25, s25, s30")
    e(f"s_add_u32 s25, s25, {a_off}")
    soff_table(k, "s25", KS // 2)
    e("s_lshl_b32 s27, s24, 8")
    e("s_lshl_b32 s30, s29, 5")
    e("s_add_u32 s27, s27, s30")
    e(f"s_add_u32 s27, s27, {FL + flag_off}")
    e("s_mul_i32 s30, s29, 5120")
    e("v_add_u32 v4, s30, v2")
    e("v_add_u32 v5, 0xf000, v4")
    e("v_add_u32 v6, 0x1e000, v4")
    e("s_lshl_b32 s38, s24, 11")
    e("s_lshr_b32 s36, s20, 1")
    e("s_lshl_b32 s36, s36, 9")
    e("s_add_u32 s38, s38, s36")
    e("s_and_b32 s36, s20, 1")
    e("s_lshl_b32 s36, s36, 3")
    e("s_add_u32 s38, s38, s36")
    e("s_lshl_b32 s36, s29, 8")
    e("s_add_u32 s38, s38, s36")
    e(f"s_add_u32 s38, s38, {L_STA}")
    e("s_lshl_b32 s36, s20, 1")
    e("s_add_u32 s36, s36, s29")
    e("s_lshl_b32 s36, s36, 2")
    e("s_lshl_b32 s37, s24, 8")
    e("s_add_u32 s36, s36, s37")
    e(f"s_add_u32 s36, s36, {FL + F_X}")
    e("s_mul_i32 s30, s18, 5120")
    e(f"s_add_u32 s30, s30, {xch}")
    e("v_add_u32 v14, s30, v2")
    e("s_xor_b32 s30, s18, 2")
    e("s_mul_i32 s30, s30, 5120")
    e(f"s_add_u32 s30, s30, {xch}")
    e("v_add_u32 v15, s30, v2")
    e("s_waitcnt vmcnt(0)")
    for d in range(10):
        dst = ACC + 8*(d // 2) + 2*(d % 2)
        e(f"v_lshlrev_b32 v{dst}, 16, v{XR+d}")
        e(f"v_and_b32 v{dst+1}, 0xffff0000, v{XR+d}")
        if bias:
            e(f"v_lshlrev_b32 v10, 16, v{BR+d}")
            e(f"v_and_b32 v11, 0xffff0000, v{BR+d}")
            e(f"v_pk_add_f32 v[{dst}:{dst+1}], v[{dst}:{dst+1}], v[10:11]")
    poll(k, "s27", 8, 10, "s85")
    stamp(k, {"o": 6, "2": 12}[pfx])
    def areg(s, m): return AR + 8 * (s % R) + 4 * m
    def lda(i):
        s, m = divmod(i, 2)
        a = areg(s, m)
        k.vmem(f"buffer_load_dwordx4 v[{a}:{a+3}], v{7+m}, s[4:7], s{40+s//2} offen offset:{2048*(s%2)} sc1", ("a", i))
    def wread(s, T, dst, tag):
        b, off = divmod(lds_of(2*s), 0xf000)
        if off + 4096 > 65535: b += 1; off -= 0xf000
        assert off + 1024*T >= 0 or True
        if off < 0:
            b -= 1; off += 0xf000
        assert off + 1024*T <= 65535, (s, T, off)
        k.ds(f"ds_read_b128 v[{dst}:{dst+3}], v{4+b} offset:{off + 1024*T}", tag)
    word = C_CONS if pfx == "2" else C_RD
    def xcheck():
        Tt = C2 + max(SLOTS.index(sl) for sl in X2S) // 2 if pfx == "2" else 2
        lf = k.newlabel("L_xc"); lb = lf + "_b"
        k.ensure("xc")
        chk(k, VT + 3, Tt, lf)
        k.label(lb)
        cold.label(lf)
        spin(cold, word - CTL, Tt)
        cold.e(f"s_branch {lb}")
    ev = {(KS-2)*NT + 1: [lambda: k.ds(cread(VT + 3, word - CTL), "xc")], (KS-1)*NT + 1: [xcheck]}
    mainloop(k, cold, NT, KS, wread, lambda s, m: f"v[{areg(s, m)}:{areg(s, m)+3}]", lda, 2*KS, OPT.get("pre2", 6), R, land_T, cons_T,
             (False, True), ev, [], 0, ACC, WF)
    stamp(k, {"o": 7, "2": 13}[pfx])
    e(f"v_mov_b32 v{VT+1}, {cons_x}")
    e("s_xor_b32 s30, s18, 2")
    e("s_lshl_b32 s30, 1, s30")
    e("s_nop 0")
    for T in range(5):
        if T == 3: e("s_nop 1")
        e(f"ds_write_b128 v14, v[{ACC+8*T+4}:{ACC+8*T+7}] offset:{1024*T}")
    e(f"ds_write_b8 v{VB_}, v{VT+1} offset:{64+C_XF-CTL}")
    e("v_mov_b32 v10, 0x3f803f80")
    e("v_mov_b32 v42, 0")
    e("v_mov_b32 v43, 0")
    L = k.newlabel("L_xw")
    e("s_mov_b32 s90, 0")
    k.label(L)
    e(cread(VT, C_XF - CTL))
    e("s_add_u32 s90, s90, 1")
    e(f"s_cmp_gt_u32 s90, {SPIN_MAX*8}")
    e(f"s_cbranch_scc1 {L}_out")
    e("s_waitcnt lgkmcnt(0)")
    e(f"v_cmp_gt_u32 vcc, {cons_x}, v{VT}")
    e("s_and_b32 s37, vcc_lo, s30")
    e(f"s_cbranch_scc1 {L}")
    k.label(L + "_out")
    RX = AR
    for T in range(5):
        e(f"ds_read_b128 v[{RX+4*T}:{RX+4*T+3}], v15 offset:{1024*T}")
    e(f"ds_write_b8 v{VB_}, v{VT+1} offset:{64+C_CONS-CTL}")
    for T in range(5):
        e(f"s_waitcnt lgkmcnt({5-T})")
        for j in (0, 2):
            e(f"v_pk_add_f32 v[{RX+4*T+j}:{RX+4*T+j+1}], v[{RX+4*T+j}:{RX+4*T+j+1}], v[{ACC+8*T+j}:{ACC+8*T+j+1}]")
        for j in (0, 2):
            e(f"v_cvt_pk_bf16_f32 v{WF+2*T+j//2}, v{RX+4*T+j}, v{RX+4*T+j+1}")
    if final_branch:
        lf = k.newlabel("L_final")
        e("s_cmp_eq_u32 s23, 1")
        e(f"s_cbranch_scc1 {lf}")
        c = cold
        c.label(lf)
        c.e("v_mul_u32_u24 v13, 1280, v13")
        c.e("v_add_u32 v40, v40, v13")
        c.e("v_add_u32 v41, v41, v13")
        c.e("s_mul_i32 s30, s24, 40960")
        c.e("s_add_u32 s34, s34, s30")
        c.e("s_mul_i32 s30, s29, 20480")
        c.e("s_add_u32 s34, s34, s30")
        c.e(f"buffer_store_dwordx4 v[{WF}:{WF+3}], v40, s[8:11], s34 offen")
        c.e(f"buffer_store_dwordx4 v[{WF+4}:{WF+7}], v40, s[8:11], s34 offen offset:64")
        c.e(f"buffer_store_dwordx2 v[{WF+8}:{WF+9}], v41, s[8:11], s34 offen offset:128")
        c.e("s_branch L_mega_fin")
    def fin(kk, sc):
        kk.e(f"buffer_store_dwordx4 v[{WF}:{WF+3}], v7, s[4:7], s32 offen{sc}")
        kk.e(f"buffer_store_dwordx4 v[{WF+4}:{WF+7}], v7, s[4:7], s32 offen offset:2048{sc}")
        kk.e(f"buffer_store_dwordx2 v[{WF+8}:{WF+9}], v9, s[4:7], s33 offen{sc}")
        for r in range(10):
            kk.e(f"v_dot2_f32_bf16 v42, v{WF+r}, v10, v42")
            kk.e(f"v_dot2_f32_bf16 v43, v{WF+r}, v{WF+r}, v43")
        kk.e("s_nop 2")
        for sw in ("v_permlane32_swap_b32", "v_permlane16_swap_b32"):
            kk.e("v_mov_b32 v10, v42")
            kk.e("v_mov_b32 v11, v43")
            kk.e("s_nop 1")
            kk.e(f"{sw} v42, v10")
            kk.e(f"{sw} v43, v11")
            kk.e("s_nop 0")
            kk.e("v_add_f32 v42, v42, v10")
            kk.e("v_add_f32 v43, v43, v11")
        kk.e("s_mov_b64 exec, 0xffff")
        kk.e(f"buffer_store_dwordx2 v[42:43], v2, s[4:7], s38 offen{sc}")
        kk.e("s_mov_b64 exec, -1")
        publish(kk, "s36", 10, sc, pubval)
    dual(k, cold, fin)

def att_addr(k, ee, vk, vv0, vv1):
    e = k.e
    e("v_lshrrev_b32 v40, 5, v1")
    e("v_and_b32 v42, 0x13, v1")
    e("v_bfe_u32 v43, v1, 2, 1")
    e("v_lshl_add_u32 v42, v43, 3, v42")
    e("v_bfe_u32 v43, v1, 3, 1")
    e("v_lshl_add_u32 v42, v43, 2, v42")
    e("v_lshlrev_b32 v42, 4, v42")
    if ee == 0:
        e("v_xor_b32 v46, 0x80, v42")
        e("v_add_u32 v46, 1024, v46")
    e(f"v_add_u32 v43, {3*ee}, v40")
    e("v_and_b32 v44, 3, v43")
    e("v_lshlrev_b32 v44, 6, v44")
    e("v_xor_b32 v44, v44, v42")
    e(f"v_lshl_add_u32 {vk}, v43, 9, v44")
    e(f"v_add_u32 {vk}, s29, {vk}")
    e("v_and_b32 v42, 1, v1")
    e(f"v_add_u32 v42, {3*ee}, v42")
    e("v_bfe_u32 v43, v1, 1, 1")
    e("v_lshlrev_b32 v43, 3, v43")
    e("v_lshl_add_u32 v43, v42, 9, v43")
    e("v_and_b32 v44, 0x13, v1")
    e("v_cmp_eq_u32 vcc, 16, v44")
    e(f"v_mov_b32 v45, {1024 + 8*ee}")
    e("v_mov_b32 v41, 2")
    e("v_cndmask_b32 v43, v43, v45, vcc")
    e("v_cndmask_b32 v42, v42, v41, vcc")
    e("v_add_u32 v42, 5, v42")
    e("v_and_b32 v42, 3, v42")
    e("v_lshlrev_b32 v42, 6, v42")
    e("v_cmp_lt_u32 vcc, 16, v44")
    e("v_bfe_u32 v44, v1, 2, 2")
    e("v_lshl_add_u32 v44, v40, 3, v44")
    e("v_lshlrev_b32 v44, 4, v44")
    e("v_xor_b32 v45, v44, v42")
    e(f"v_add_u32 {vv0}, v45, v43")
    e("v_xor_b32 v45, 64, v45")
    e(f"v_add_u32 {vv1}, v45, v43")
    e("v_mov_b32 v45, 2560")
    e(f"v_cndmask_b32 {vv0}, {vv0}, v45, vcc")
    e(f"v_cndmask_b32 {vv1}, {vv1}, v45, vcc")
    e(f"v_add_u32 {vv0}, s30, {vv0}")
    e(f"v_add_u32 {vv1}, s30, {vv1}")

AQ1 = [16, 20]; AQS = 24
def attention(a, cold, qsh):
    e = a.e
    VK = [4, 5]; VK2 = 6; VV = [[8, 9], [32, 33]]
    MK = [10, 11, 12, 13, 14, 15, 253, 254]
    Q2 = [AQS, AQS + 2]; MF = AQS; ONE = 30; MX = 34; TMP = 38
    KR, VR, SBASE = 40, 56, 72
    def slot(n): return SBASE + 16 * n
    SL = [{kt: kt for kt in range(9)}, {8: 9, 0: 10, 1: 10, 2: 1, 3: 2, 4: 3, 5: 4, 6: 5, 7: 6}]
    OA = [slot(0), slot(7)]
    e("v_lshrrev_b32 v40, 5, v1")
    e("v_and_b32 v41, 31, v1")
    e("v_lshlrev_b32 v40, 3, v40")
    e("v_sub_u32 v40, v41, v40")
    for rho in range(16):
        G, j = divmod(rho, 8)
        e(f"v_cmp_le_i32_e64 s[{40+2*rho}:{41+2*rho}], {16*G+j}, v40")
    e("s_mov_b32 s32, -1")
    e("s_mov_b32 s33, 0")
    e("s_mov_b32 s34, 0x07060302")
    e("v_mov_b32 v7, 0x3f80")
    e(f"v_cndmask_b32 v{AQS}, v{qsh}, v7, s[32:33]")
    e(f"v_cndmask_b32 v{AQS+1}, v{qsh+1}, 0, s[32:33]")
    e(f"v_mov_b32 v{AQS+2}, 0")
    e(f"v_mov_b32 v{AQS+3}, 0")
    e(f"v_cndmask_b32 v{AQS+4}, v{qsh+2}, v7, s[32:33]")
    e(f"v_cndmask_b32 v{AQS+5}, v{qsh+3}, 0, s[32:33]")
    e(f"s_mul_i32 s29, s18, {TSK}")
    e(f"s_add_u32 s29, s29, {KB}")
    e(f"s_mul_i32 s30, s18, {TSV}")
    for ee in range(2):
        att_addr(a, ee, f"v{VK[ee]}", f"v{VV[ee][0]}", f"v{VV[ee][1]}")
    e("v_mov_b32 v45, 2560")
    e(f"v_cndmask_b32 v{VK2}, v46, v45, s[32:33]")
    e(f"v_add_u32 v{VK2}, s29, v{VK2}")
    e(f"v_mov_b32 v{ONE}, 0x3f803f80")
    e(f"v_mov_b32 v{ONE+1}, 0x3f803f80")
    e("v_mov_b32 v7, 0xffff")
    for j in range(8):
        e(f"v_cndmask_b32 v{MK[j]}, 0, v7, s[{40+4*j}:{41+4*j}]")
        e(f"v_cndmask_b32 v{MK[j]}, v{MK[j]}, -1, s[{42+4*j}:{43+4*j}]")
    e("s_lshl_b32 s26, s16, 2")
    e("s_add_u32 s26, s26, s18")
    e("s_lshl_b32 s31, s26, 8")
    e("s_lshl_b32 s27, s17, 2")
    e("s_add_u32 s31, s31, s27")
    e(f"s_add_u32 s31, s31, {FL + F_O}")
    e("s_mul_i32 s26, s26, 40960")
    e("s_mul_i32 s27, s17, 2560")
    e("s_add_u32 s26, s26, s27")
    e(f"s_add_u32 s26, s26, {L_O}")
    spin(a, C_LOC - CTL, 1)
    spin(a, C_HK - CTL, 1)
    stamp(a, 4)
    def ic(): return sum(1 for l in a.lines if l.startswith("    ") and not l.strip().startswith(";"))
    mark = {}
    dsq = []
    def after_mfma():
        for _ in range(2):
            if dsq:
                x = dsq.pop(0)
                if callable(x): x()
                else: a.ds(*x)
    def kreads(u, kt, buf):
        return [(f"ds_read_b128 v[{buf}:{buf+3}], v{VK[u]} offset:{kt*TSK}", ("k", u, kt)),
                (f"ds_read_b128 v[{buf+4}:{buf+7}], v{VK2} offset:{kt*TSK}", ("k", u, kt))]
    def vreads(u, kt, buf):
        return [(f"ds_read_b64_tr_b16 v[{buf+4*G+2*r}:{buf+4*G+2*r+1}], v{VV[u][r]} offset:{kt*TSV + G*256}", ("v", u, kt))
                for G in range(2) for r in range(2)]
    def smfma(u, kt, buf, half, wall=False):
        d = slot(SL[u][kt])
        a.ensure(("k", u, kt), wall)
        if half == 0:
            e(f"v_mfma_f32_32x32x16_bf16 v[{d}:{d+15}], v[{buf}:{buf+3}], v[{AQ1[u]}:{AQ1[u]+3}], 0")
        else:
            e(f"v_mfma_f32_32x32x16_bf16 v[{d}:{d+15}], v[{buf+4}:{buf+7}], v[{Q2[u]}:{Q2[u]+3}], v[{d}:{d+15}]")
            mark[("s", u, kt)] = ic()
    started = {}
    def maxops(u, kt, keys):
        base = slot(SL[u][kt]); ops = []
        for r in range(0, 16, 2):
            ci = (r // 2) % 4
            if (u, ci) not in started:
                started[(u, ci)] = 1
                ops.append((keys, f"v_max_f32_e64 v{MX+ci}, v{base+r}, v{base+r+1}"))
            else:
                ops.append((keys, f"v_max3_f32 v{MX+ci}, v{MX+ci}, v{base+r}, v{base+r+1}"))
        return ops
    def mergeops(u):
        s8, s0 = slot(SL[u][8]), slot(SL[u][0])
        keys = [("s", u, 8), ("s", u, 0)]
        return [(keys, f"v_cndmask_b32 v{s8+r}, v{s0+r}, v{s8+r}, s[{40+2*r}:{41+2*r}]") for r in range(16)]
    def ready(keys): return all(kk in mark and ic() >= mark[kk] + 12 for kk in keys)
    def drain_v(vq, n, force=False):
        while vq and n > 0:
            if not ready(vq[0][0]):
                if not force: return
                for kk in vq[0][0]: need(kk)
            e(vq.pop(0)[1]); n -= 1
    def finalops():
        t0, t1 = TMP, TMP + 1
        return [f"v_max_f32 v{MX}, v{MX}, v{MX+1}",
                f"v_max3_f32 v{MX}, v{MX}, v{MX+2}, v{MX+3}",
                f"v_mov_b32 v{MX+1}, v{MX}",
                "s_nop 1",
                f"v_permlane32_swap_b32 v{MX}, v{MX+1}",
                "s_nop 0",
                f"v_max_f32 v{MX}, v{MX}, v{MX+1}",
                f"v_cndmask_b32 v{t0}, 0, -v{MX}, s[32:33]",
                f"v_and_b32 v{t1}, 0xffff0000, v{t0}",
                f"v_sub_f32 v{t0}, v{t0}, v{t1}",
                f"v_and_b32 v{MX}, 0xffff0000, v{t0}",
                f"v_sub_f32 v{t0}, v{t0}, v{MX}",
                f"v_perm_b32 v{MF}, v{MX}, v{t1}, s34",
                f"v_lshrrev_b32 v{MF+1}, 16, v{t0}"]
    def submfma(u, kt):
        d = slot(SL[u][kt])
        e(f"v_mfma_f32_32x32x16_bf16 v[{d}:{d+15}], v[{ONE}:{ONE+3}], v[{MF}:{MF+3}], v[{d}:{d+15}]")
        mark[("m", u, kt)] = ic()
    def need(key, dist=12):
        n = mark[key] + dist - ic()
        if n > 0:
            e(f"s_nop {n-1}")
            mark[key] = -99
    pvfirst = {0: True, 1: True}
    def pv(u, vb, pb, tag, wall=False):
        a.ensure(tag, wall)
        o = OA[u]
        csrc = "0" if pvfirst[u] else f"v[{o}:{o+15}]"
        pvfirst[u] = False
        e(f"v_mfma_f32_32x32x16_bf16 v[{o}:{o+15}], v[{vb}:{vb+3}], v[{pb}:{pb+3}], {csrc}")
        mark[("o", u)] = ic()
    def prof(ix):
        if PROF:
            a.e("s_memtime s[92:93]"); a.e("s_waitcnt lgkmcnt(0)"); a.e("s_lshr_b32 s94, s95, 4"); a.e(f"s_add_u32 s94, s94, {ix}"); a.e("s_mov_b32 m0, s94"); a.e("s_nop 0"); a.e("v_writelane_b32 v3, s92, m0")
    a.reset_ds()
    order = [7, 8, 0, 6, 5, 4, 3, 2, 1]
    kb4 = [KR, KR + 8, VR, VR + 8]
    for n in range(3):
        for x in kreads(0, order[n], kb4[n]): a.ds(*x)
    dsq += kreads(0, order[3], kb4[3])
    vq = []
    for n, kt in enumerate(order):
        smfma(0, kt, kb4[n % 4], 0)
        after_mfma()
        drain_v(vq, 5)
        smfma(0, kt, kb4[n % 4], 1)
        if n + 4 < 9: dsq += kreads(0, order[n + 4], kb4[n % 4])
        if n == 5: dsq += kreads(1, 0, KR + 8)
        if n == 6: dsq += [(cread(7, C_HV - CTL), "hv"), (cread(255, C_MODE - CTL), "hv")]
        if n == 8: dsq += kreads(1, 8, KR)
        after_mfma()
        drain_v(vq, 5)
        if kt == 0: vq += mergeops(0) + maxops(0, 8, [])
        elif kt != 8: vq += maxops(0, kt, [("s", 0, kt)])
    assert not dsq
    lf = a.newlabel("L_hv"); lb = lf + "_b"
    a.ensure("hv")
    e("v_readfirstlane_b32 s22, v255")
    drain_v(vq, 99, True)
    for op in finalops(): e(op)
    chk(a, 7, 1, lf)
    a.label(lb)
    cold.label(lf); spin(cold, C_HV - CTL, 1); cold.e(f"s_branch {lb}")
    dsq += vreads(0, 1, VR + 8)
    submfma(0, 1); after_mfma(); submfma(0, 2); after_mfma()
    prof(44)
    ev = {}
    def at(t, g, f): ev.setdefault((t, g), []).append(f)
    kbuf = {8: KR, 0: KR + 8}
    for n, kt in enumerate([1, 2, 3, 4, 5, 6, 7]): kbuf[kt] = KR + 8 * (n % 2)
    plan = {8: (1, 1, 3), 0: (1, 5, 7), 1: (2, 10, 13), 2: (3, 4, 9), 3: (4, 4, 9), 4: (5, 4, 9), 5: (6, 4, 9), 6: (7, 4, 9), 7: (7, 11, 13)}
    seq1 = [8, 0, 1, 2, 3, 4, 5, 6, 7]
    vq1 = []
    def drain_merge():
        while vq1 and "cndmask" in vq1[0][1]: drain_v(vq1, 1, True)
    for n, kt in enumerate(seq1):
        t, g0, g1 = plan[kt]
        if kt == 1: at(t, g0, drain_merge)
        at(t, g0, lambda kt=kt: (smfma(1, kt, kbuf[kt], 0), after_mfma()))
        def second(kt=kt, n=n):
            smfma(1, kt, kbuf[kt], 1)
            if n + 2 < 9:
                nk = seq1[n + 2]
                dsq[0:0] = kreads(1, nk, kbuf[nk])
            after_mfma()
            if n + 2 == 8: post(a, C_RD - CTL, 1)
            if kt == 0: vq1.extend(mergeops(1) + maxops(1, 8, []))
            elif kt != 8: vq1.extend(maxops(1, kt, [("s", 1, kt)]))
        at(t, g1, second)
    def expstream(u, extra_ev, vqx, rate):
        prev_tail = None
        for kt in range(1, 9):
            sr_ = slot(SL[u][kt])
            need(("m", u, kt))
            if kt > 1: dsq.extend(vreads(u, kt, VR + 8*(kt % 2)))
            seq = []
            for r in range(0, 16, 2):
                seq.append([f"v_exp_f32 v{sr_+r}, v{sr_+r}", f"v_exp_f32 v{sr_+r+1}, v{sr_+r+1}"])
                if r >= 2: seq.append([f"v_cvt_pk_bf16_f32 v{sr_+r//2-1}, v{sr_+r-2}, v{sr_+r-1}"])
            for i, grp in enumerate(seq):
                for ins in grp: e(ins)
                if i == 0 and prev_tail: e(prev_tail)
                if kt > 1 and i in (2, 7):
                    G = 0 if i == 2 else 1
                    pv(u, VR + 8*((kt-1) % 2) + 4*G, slot(SL[u][kt-1]) + 4*G, ("v", u, kt-1), True)
                    after_mfma()
                if i == 11 and kt + 2 <= 8:
                    submfma(u, kt + 2); after_mfma()
                for f in extra_ev.get((kt, i), []): f()
                if kt == 8 and i in (9, 11):
                    if i == 9: dsq.extend(vreads(u, 0, KR))
                    after_mfma()
                drain_v(vqx, rate)
            assert not dsq, (u, kt, dsq)
            prev_tail = f"v_cvt_pk_bf16_f32 v{sr_+7}, v{sr_+14}, v{sr_+15}"
        return prev_tail
    def tail(u, prev_tail):
        s8 = slot(SL[u][8]); P0 = s8 + 8
        e(prev_tail)
        for G in range(2):
            for j in range(4*G, 4*G + 4):
                e(f"v_and_b32 v{P0+j}, v{s8+j}, v{MK[j]}")
            for j in range(4*G, 4*G + 4):
                e(f"v_xor_b32 v{s8+j}, v{s8+j}, v{P0+j}")
            pv(u, VR + 4*G, P0 + 4*G, ("v", u, 0))
            e("s_nop 0")
            pv(u, KR + 4*G, s8 + 4*G, ("v", u, 0))
            after_mfma()
    def normops(u, od):
        o = OA[u]; keys = [("o", u)]
        ops = [(keys, f"v_rcp_f32 v6, v{o+12}"), ([], "s_nop 0"), ([], "v_mov_b32 v7, v6")]
        ops += [([], f"v_pk_mul_f32 v[{o+r}:{o+r+1}], v[{o+r}:{o+r+1}], v[6:7]") for r in range(0, 12, 2)]
        ops += [([], f"v_cvt_pk_bf16_f32 v{od+r//2}, v{o+r}, v{o+r+1}") for r in range(0, 8, 2)]
        return ops
    pt = expstream(0, ev, vq1, 2)
    drain_v(vq1, 99, True)
    for op in finalops(): e(op)
    e("s_nop 1")
    submfma(1, 1); submfma(1, 2)
    dsq += vreads(1, 1, VR + 8)
    tail(0, pt)
    prof(42)
    o0 = OA[0]
    vq0 = normops(0, 16) + [([], f"v_cvt_pk_bf16_f32 v20, v{o0+8}, v{o0+9}"), ([], f"v_cvt_pk_bf16_f32 v21, v{o0+10}, v{o0+11}")]
    ev2 = {(3, 0): [lambda: dual(a, cold, lambda kk, sc: kk.e(f"buffer_store_dwordx4 v[16:19], v2, s[4:7], s26 offen{sc}"))],
           (8, 12): [lambda: post(a, C_RD - CTL, 2)]}
    pt = expstream(1, ev2, vq0, 1)
    assert not vq0
    e("s_nop 0")
    tail(1, pt)
    o1 = OA[1]; OD = slot(0)
    vqn = normops(1, OD) + [([], f"v_cvt_pk_bf16_f32 v22, v{o1+8}, v{o1+9}"), ([], f"v_cvt_pk_bf16_f32 v23, v{o1+10}, v{o1+11}")]
    need(("o", 1))
    for _, op in vqn: e(op)
    prof(40)
    def aep(kk, sc):
        kk.e(f"buffer_store_dwordx4 v[{OD}:{OD+3}], v2, s[4:7], s26 offen offset:1536{sc}")
        kk.e("s_mov_b32 exec_hi, 0")
        kk.e(f"buffer_store_dwordx4 v[20:23], v2, s[4:7], s26 offen offset:1024{sc}")
        kk.e("s_mov_b32 exec_hi, -1")
        publish(kk, "s31", 10, sc, "s85")
    dual(a, cold, aep)

STG = CTL - 32768
def job_lanes(k):
    e = k.e
    e("v_bfe_u32 v26, v1, 4, 1")
    e("v_and_b32 v27, 15, v1")
    e("v_lshlrev_b32 v7, 11, v26")
    e("v_lshl_add_u32 v7, v27, 4, v7")
    e("v_lshl_add_u32 v7, v5, 3, v7")
    e("v_lshlrev_b32 v47, 10, v5")
    e("v_lshl_add_u32 v47, v26, 8, v47")
    e("v_lshl_add_u32 v47, v27, 4, v47")
def colunit(k, vos, vdst, t0):
    e = k.e
    e(f"v_add_u32 {vdst}, 80, {vos}")
    e(f"v_add_u32 {t0}, 155, {vos}")
    e(f"v_cmp_lt_u32 vcc, 4, {vos}")
    e("s_nop 1")
    e(f"v_cndmask_b32 {vdst}, {vdst}, {t0}, vcc")
    e(f"v_subrev_u32 {t0}, 10, {vos}")
    e(f"v_lshlrev_b32 {t0}, 2, {t0}")
    e("s_mov_b32 s91, 0x413022")
    e(f"v_lshrrev_b32 {t0}, {t0}, s91")
    e(f"v_and_b32 {t0}, 15, {t0}")
    e(f"v_cmp_lt_u32 vcc, 9, {vos}")
    e("s_nop 1")
    e(f"v_cndmask_b32 {vdst}, {vdst}, {t0}, vcc")

def colsum(k, frags, soff):
    e = k.e
    for q in range(4): e(f"v_mov_b32 v{64+q}, 0")
    for r in range(4):
        for n in range(len(frags[0])):
            for cb, fl in enumerate(frags):
                e(f"v_dot2_f32_bf16 v{64+cb}, v{fl[n]+r}, v40, v{64+cb}")
    e("s_nop 2")
    for q in range(4): e(f"v_mov_b32 v{68+q}, v{64+q}")
    e("s_nop 1")
    for q in range(4): e(f"v_permlane16_swap_b32 v{64+q}, v{68+q}")
    e("s_nop 1")
    for q in range(4): e(f"v_add_f32 v{64+q}, v{64+q}, v{68+q}")
    e("s_mov_b32 s60, 0xffff")
    e("s_mov_b32 s61, 0xffff")
    e("v_cndmask_b32 v12, v65, v64, s[60:61]")
    e("v_cndmask_b32 v13, v67, v66, s[60:61]")
    e("v_and_b32 v14, 15, v1")
    e("v_lshl_add_u32 v14, v5, 4, v14")
    e("v_lshlrev_b32 v14, 2, v14")
    e("v_bfe_u32 v68, v1, 4, 1")
    e("v_mul_u32_u24 v68, 5120, v68")
    e("v_add_u32 v14, v14, v68")
    if soff:
        e(f"buffer_store_dword v12, v14, s[4:7], {soff} offen sc1")
        e(f"s_add_u32 {soff}, {soff}, 10240")
        e(f"buffer_store_dword v13, v14, s[4:7], {soff} offen sc1")

def epoch(k, v):
    e = k.e
    e(f"v_readfirstlane_b32 s96, {v}")
    e("s_mul_i32 s97, s96, 0x9e3779b1")
    e("s_add_u32 s97, s97, 0x7f4a7c15")
    e("s_add_u32 s85, s97, 1")
    e("s_add_u32 s86, s97, 1")
    e("s_add_u32 s87, s97, 2")
    e("s_add_u32 s98, s97, 3")

def gen_mega():
    c = St("cw"); h = St("hw"); cold = St("cold"); top = St("top")
    e = top.e
    if PROF:
        e("s_memrealtime s[88:89]")
    e("s_load_dwordx16 s[24:39], s[0:1], 0")
    e(f"s_load_dwordx2 s[60:61], s[0:1], {KA_OUT}")
    e(f"s_load_dwordx2 s[62:63], s[0:1], {KA_WS}")
    e("s_cmp_ge_u32 s2, 256")
    e("s_cbranch_scc1 L_mega_end")
    e("v_lshrrev_b32 v10, 6, v0")
    e("v_and_b32 v1, 63, v0")
    e("v_readfirstlane_b32 s18, v10")
    e("s_and_b32 s3, s2, 7")
    e("s_lshr_b32 s99, s2, 3")
    e("s_getpc_b64 s[40:41]")
    top.label("L_pc")
    e("s_sub_u32 s40, s40, L_pc-L_code_begin")
    e("s_subb_u32 s41, s41, 0")
    e("s_mov_b32 s42, L_code_end-L_code_begin")
    e("s_mov_b32 s43, 0x00020000")
    e("s_and_b32 s44, s99, 1")
    e("s_lshl_b32 s44, s44, 3")
    e("s_add_u32 s44, s44, s18")
    e("s_lshl_b32 s44, s44, 12")
    e("v_lshlrev_b32 v4, 6, v1")
    e("v_add_u32 v5, s44, v4")
    e("buffer_load_dword v254, v5, s[40:43], 0 offen")
    e("s_and_b32 s17, s99, 15")
    e("s_lshl_b32 s16, s3, 1")
    e("s_lshr_b32 s83, s99, 4")
    e("s_add_u32 s16, s16, s83")
    e("s_and_b32 s20, s99, 7")
    e("s_lshl_b32 s19, s3, 2")
    e("s_lshr_b32 s84, s99, 3")
    e("s_add_u32 s19, s19, s84")
    e("v_lshlrev_b32 v2, 4, v1")
    e("v_mov_b32 v3, 0")
    e("s_mov_b32 s21, 0")
    e("s_mov_b32 s22, 0")
    e("s_mov_b32 s23, 0")
    e("s_mov_b32 s95, 0")
    e(f"s_mov_b32 s72, {FL}")
    e("s_and_b32 s73, s18, 3")
    e(f"v_and_b32 v{VC}, 3, v1")
    e(f"v_add_u32 v{VC}, {CTL - 64}, v{VC}")
    e(f"v_mov_b32 v{VB_}, 0x7fff0000")
    e(f"s_add_u32 s44, s73, {CTL - 64}")
    e(f"v_writelane_b32 v{VB_}, s44, 0")
    e("v_and_b32 v12, 31, v1")
    e("v_lshlrev_b32 v12, 2, v12")
    e("v_mov_b32 v13, 0")
    e(f"v_add_u32 v12, {CTL}, v12")
    e("ds_write_b32 v12, v13")
    e("s_lshl_b32 s74, s2, 13")
    e(f"s_add_u32 s74, s74, {AUGP}")
    e(f"s_mul_i32 s75, s20, {WTO_S}")
    e(f"s_add_u32 s75, s75, {WTO}")
    e(f"s_mul_i32 s76, s17, {WT1_S}")
    e(f"s_add_u32 s76, s76, {WT1}")
    e(f"s_mul_i32 s77, s20, {WT2_S}")
    e(f"s_add_u32 s77, s77, {WT2}")
    e("s_getreg_b32 s79, hwreg(HW_REG_XCC_ID)")
    e("s_and_b32 s79, s79, 7")
    e("v_mov_b32 v6, 0")
    e(f"s_mov_b32 s44, {FL + F_EP}")
    e("s_waitcnt lgkmcnt(0)")
    srd(top, 4, 62, WS_END if not PROF else 0x10000000)
    e("buffer_load_dword v255, v6, s[4:7], s44 offen sc1")
    srd(top, 8, 60, S_*D_*2)
    srd(top, 12, 38, D_*2)
    if OPT.get("tlb", 1):
        e("s_cmp_lg_u32 s18, 7")
        e("s_cbranch_scc1 L_notlb")
        e("v_lshlrev_b32 v6, 19, v1")
        e("buffer_load_dword v8, v6, s[4:7], 0 offen")
        e("buffer_load_dword v9, v6, s[8:11], 0 offen")
        e("buffer_load_dword v10, v6, s[12:15], 0 offen")
        for n, (lo, nb) in enumerate(((28, D_*D_*2), (32, D_*F_*2), (36, D_*F_*2), (34, F_*2), (26, D_*3*D_*2))):
            srd(top, 40, lo, nb)
            e(f"buffer_load_dword v{11+n}, v6, s[40:43], 0 offen")
        top.label("L_notlb")
    e("s_barrier")
    stamp(top, 0)
    e("v_lshrrev_b32 v5, 5, v1")
    e("v_lshrrev_b32 v24, 4, v1")
    e("v_and_b32 v25, 3, v1")
    e("v_lshl_add_u32 v24, v24, 2, v25")
    e("v_bfe_u32 v25, v1, 2, 2")
    e("v_mov_b32 v40, 0x3f803f80")
    e("s_lshl_b32 s70, s73, 3")
    e("s_add_u32 s70, s70, s3")
    e("s_lshl_b32 s70, s70, 5")
    e("s_add_u32 s70, s70, s99")
    e("s_cmp_ge_u32 s18, 4")
    e("s_cbranch_scc1 L_hw_start")
    e("s_setprio 1")
    srd(top, 40, 24, S_*D_*2)
    e("s_lshl_b32 s64, s16, 4")
    e("s_add_u32 s64, s64, s17")
    e("s_mul_i32 s66, s64, 10240")
    e("s_mul_i32 s65, s18, 320")
    e("s_add_u32 s66, s66, s65")
    e("v_and_b32 v6, 7, v1")
    e("v_lshrrev_b32 v20, 3, v1")
    e("v_mul_u32_u24 v21, 1280, v6")
    e("v_lshl_add_u32 v21, v20, 4, v21")
    for q in range(4): e(f"v_mov_b32 v{16+q}, 0")
    e("buffer_load_dwordx4 v[8:11], v21, s[40:43], s66 offen")
    e("buffer_load_dwordx4 v[12:15], v21, s[40:43], s66 offen offset:128")
    e("s_mov_b32 exec_hi, 0")
    e("buffer_load_dwordx4 v[16:19], v21, s[40:43], s66 offen offset:256")
    e("s_mov_b32 exec_hi, -1")
    job_lanes(top)
    e("s_cmp_ge_u32 s70, 320")
    e("s_cbranch_scc1 L_job_o")
    e("s_and_b32 s58, s70, 15")
    e("s_lshr_b32 s59, s70, 4")
    e("s_mov_b32 s54, 3072")
    e(f"s_mul_i32 s56, s59, {32*3072}")
    e("s_mul_i32 s60, s58, 192")
    e("s_add_u32 s56, s56, s60")
    e(f"s_mul_i32 s55, s58, {WT1_S}")
    e("s_mul_i32 s60, s59, 6144")
    e("s_add_u32 s55, s55, s60")
    e(f"s_add_u32 s55, s55, {WT1}")
    e("s_mov_b32 s57, 12")
    e("s_mul_i32 s62, s58, 160")
    e("s_add_u32 s62, s62, s59")
    e("s_lshl_b32 s62, s62, 7")
    e(f"s_add_u32 s62, s62, {CSP + 16*40*512}")
    srd(top, 44, 32, D_*F_*2)
    e("v_add_u32 v34, 4096, v47")
    e("v_mov_b32 v33, v7")
    e("s_branch L_job_go")
    top.label("L_job_o")
    e("s_cmp_ge_u32 s70, 480")
    e("s_cbranch_scc1 L_job_2")
    e("s_sub_u32 s59, s70, 320")
    e("s_mov_b32 s52, 10")
    e(f"s_mov_b32 s60, {WTO_S}")
    e(f"s_mov_b32 s61, {WTO}")
    srd(top, 44, 28, D_*D_*2)
    e("s_branch L_job_g2")
    top.label("L_job_2")
    e("s_sub_u32 s59, s70, 480")
    e("s_mov_b32 s52, 24")
    e(f"s_mov_b32 s60, {WT2_S}")
    e(f"s_mov_b32 s61, {WT2}")
    srd(top, 44, 36, F_*D_*2)
    top.label("L_job_g2")
    e("s_and_b32 s58, s59, 7")
    e("s_lshr_b32 s59, s59, 3")
    e("s_mov_b32 s54, 1280")
    e(f"s_mul_i32 s56, s59, {32*1280}")
    e("s_mul_i32 s55, s58, 160")
    e("s_add_u32 s56, s56, s55")
    e("s_mul_i32 s55, s58, s60")
    e("s_add_u32 s55, s55, s61")
    e("s_cmp_ge_u32 s59, s52")
    e("s_cselect_b32 s60, s52, 0")
    e("s_cselect_b32 s61, 5120, 0")
    e("s_sub_u32 s59, s59, s60")
    e("s_mul_i32 s60, s59, 10240")
    e("s_add_u32 s55, s55, s60")
    e("s_add_u32 s55, s55, s61")
    e("s_mov_b32 s57, 10")
    e("v_add_u32 v34, 4096, v47")
    e("v_mov_b32 v35, 0x7ffffff0")
    e("v_cmp_eq_u32 vcc, 0, v5")
    e("v_and_b32 v33, 3, v1")
    e("v_lshlrev_b32 v33, 3, v33")
    e("v_cndmask_b32 v34, v35, v34, vcc")
    e("v_lshl_add_u32 v33, v25, 6, v33")
    e("v_lshl_add_u32 v33, v26, 11, v33")
    top.label("L_job_go")
    e("v_mul_lo_u32 v31, v25, s54")
    e("v_lshl_add_u32 v31, v24, 4, v31")
    e("v_cmp_gt_u32 vcc, s57, v24")
    e("v_mov_b32 v35, 0x7ffffff0")
    e("s_lshl_b32 s57, s54, 2")
    e("v_cndmask_b32 v31, v35, v31, vcc")
    e("s_lshl_b32 s58, s18, 13")
    e(f"s_add_u32 s58, s58, {STG}")
    def job_dma():
        e("s_cmp_ge_u32 s70, 864")
        e("s_cbranch_scc1 L_job_nodma")
        e("s_mov_b32 exec_hi, 0xffff")
        for t in range(8):
            e(f"s_add_u32 m0, s58, {1024*t}")
            e("s_nop 0")
            e("buffer_load_dwordx4 v31, s[44:47], s56 offen lds")
            e("s_add_u32 s56, s56, s57")
        e("s_mov_b32 exec_hi, -1")
        e("s_waitcnt vmcnt(8)")
        e("s_branch L_job_dmad")
        top.label("L_job_nodma")
        e("s_waitcnt vmcnt(0)")
        top.label("L_job_dmad")
    e("v_add_u32 v7, s58, v7")
    e("v_add_u32 v48, s58, v33")
    e("s_lshr_b32 s65, s64, 2")
    e("s_and_b32 s69, s64, 3")
    e("s_mul_i32 s66, s65, 40960")
    e("s_mul_i32 s67, s18, 10240")
    e("s_add_u32 s66, s66, s67")
    e("s_lshl_b32 s67, s69, 7")
    e("s_add_u32 s66, s66, s67")
    e("s_add_u32 s63, s66, 4096")
    e("s_add_u32 s61, s66, 8192")
    e("v_lshlrev_b32 v22, 4, v6")
    e("v_lshl_add_u32 v22, v20, 9, v22")
    e("s_lshl_b32 s68, s65, 11")
    e("s_add_u32 s67, s67, s68")
    e("s_lshl_b32 s68, s18, 9")
    e("s_add_u32 s67, s67, s68")
    e(f"s_add_u32 s67, s67, {L_STA}")
    e("v_lshlrev_b32 v23, 4, v6")
    e("v_lshl_add_u32 v23, v20, 3, v23")
    e("s_lshl_b32 s68, s64, 2")
    e("s_add_u32 s68, s68, s18")
    e("s_lshl_b32 s68, s68, 7")
    e(f"s_add_u32 s68, s68, {FL + F_X0}")
    for q in range(2): e(f"v_mov_b32 v{44+q}, 0")
    LATE = OPT.get("late", 0)
    if LATE == 0:
        if OPT.get("jdelay"): e(f"s_sleep {OPT['jdelay']}")
        job_dma()
    else:
        e("s_waitcnt vmcnt(0)")
    stamp(top, 46)
    e("buffer_store_dwordx4 v[8:11], v22, s[4:7], s66 offen sc1")
    e("buffer_store_dwordx4 v[12:15], v22, s[4:7], s63 offen sc1")
    e("s_mov_b32 exec_hi, 0")
    e("buffer_store_dwordx4 v[16:19], v22, s[4:7], s61 offen sc1")
    e("s_mov_b32 exec_hi, -1")
    for r in range(8, 20):
        e(f"v_dot2_f32_bf16 v44, v{r}, v40, v44")
        e(f"v_dot2_f32_bf16 v45, v{r}, v{r}, v45")
    epoch(top, "v255")
    for sw in ("v_permlane32_swap_b32", "v_permlane16_swap_b32"):
        e("v_mov_b32 v42, v44")
        e("v_mov_b32 v43, v45")
        e("s_nop 1")
        e(f"{sw} v44, v42")
        e(f"{sw} v45, v43")
        e("s_nop 1")
        e("v_add_f32 v44, v44, v42")
        e("v_add_f32 v45, v45, v43")
    e("s_mov_b64 exec, 0xffff")
    e("buffer_store_dwordx2 v[44:45], v23, s[4:7], s67 offen sc1")
    e("s_mov_b64 exec, -1")
    if LATE == 1: job_dma()
    else: e("s_waitcnt vmcnt(0)")
    e("v_mov_b32 v42, 0")
    e("v_mov_b32 v41, s86")
    e("s_mov_b64 exec, 1")
    e("buffer_store_dword v41, v42, s[4:7], s68 offen sc1")
    e("s_mov_b64 exec, -1")
    stamp(top, 47)
    e("s_cmp_ge_u32 s70, 864")
    e("s_cbranch_scc1 L_pro_done")
    e("s_waitcnt vmcnt(1)")
    stamp(top, 48)
    e("v_mov_b32 v15, v34")
    for sub in range(2):
        for cb in range(3):
            for rho in range(2):
                d = 16 + 12*sub + 4*cb + 2*rho
                e(f"ds_read_b64_tr_b16 v[{d}:{d+1}], v{7 if cb < 2 else 48} offset:{4096*sub + rho*1024 + cb*256}")
    e("s_waitcnt lgkmcnt(0)")
    colsum(top, [[16 + 4*cb, 28 + 4*cb] for cb in range(3)], None)
    top.label("L_pro_done")
    post(top, C_PG - CTL, 1)
    e("v_lshrrev_b32 v0, 4, v1")
    e("v_lshlrev_b32 v0, 9, v0")
    e("v_and_b32 v48, 15, v1")
    e("v_lshl_add_u32 v0, v48, 4, v0")
    e("s_mov_b32 s101, s70")
    e("s_lshl_b32 s100, s70, 7")
    e(f"s_add_u32 s100, s100, {FL + F_J}")
    stamp(top, 49)

    def next_layer(e):
        e(f"s_add_u32 s21, s21, {LS}")
        e("s_add_u32 s23, s23, 1")
        e("s_add_u32 s95, s95, 16")
        e(f"v_add_u32 v{VC}, 64, v{VC}")
        e(f"v_add_u32 v{VB_}, 64, v{VB_}")
        e("s_add_u32 s85, s85, 1")
        e("s_add_u32 s86, s86, 2")
        e("s_add_u32 s87, s87, 2")

    e = c.e
    e("s_branch L_cw_l0")
    c.label("L_cw_layer")
    stamp(c, 0)
    c.label("L_cw_l0")
    r = gemm1_main(c, cold, "q", "s86", CC, lambda cn: LQ + cn, lambda cn: CQ + cn)
    WF, ACC, RSD = r["WF"], r["ACC"], r["RSD"]
    stamp(c, 2)
    e("v_lshrrev_b32 v7, 4, v1")
    e("v_lshlrev_b32 v6, 6, v7")
    e("v_xor_b32 v6, v6, v0")
    e("s_add_u32 s31, s18, 8")
    e(f"s_mul_i32 s32, s31, {TSK}")
    e(f"s_add_u32 s32, s32, {KB}")
    e(f"s_mul_i32 s33, s31, {TSV}")
    e("v_add_u32 v8, s32, v6")
    e("s_sub_u32 s34, s33, 2560")
    e("v_add_u32 v9, s34, v6")
    e("v_cndmask_b32 v14, v9, v8, s[36:37]")
    e("s_lshl_b32 s28, s24, 4")
    e("s_add_u32 s28, s28, s17")
    e("s_lshl_b32 s30, s28, 7")
    e("s_add_u32 s30, s30, s72")
    e(f"s_add_u32 s30, s30, {F_KV}")
    e("s_mul_i32 s28, s28, 5120")
    e("s_add_u32 s28, s28, s21")
    e(f"s_add_u32 s28, s28, {L_KV}")
    e("s_add_u32 s29, s28, 4096")
    def oreg(P, m): return (WF + 8*P + 4*m) if P < 3 else AQ1[m]
    for P in range(4):
        for m in range(2):
            o = oreg(P, m)
            scale_pack(c, ACC, P, m, (RSD, RSD, RSD + 4, RSD + 2)[P], o)
            if P == 2: e("s_mov_b32 exec_hi, 0")
            if P < 3:
                so, off = ("s28", 2048*P + 256*m) if P < 2 else ("s29", 256*m)
                e(f"buffer_store_dwordx4 v[{o}:{o+3}], v6, s[4:7], {so} offen offset:{off} sc1")
            if P == 2: e("s_mov_b32 exec_hi, -1")
    spin(c, C_CONS - CTL, CQ + 10)
    for P in range(3):
        if P == 2: e("s_mov_b32 exec_hi, 0")
        for m in range(2):
            o = oreg(P, m)
            e(f"ds_write_b128 v{(8, 14, 9)[P]}, v[{o}:{o+3}] offset:{2048*P + 256*m}")
    e("s_mov_b32 exec_hi, -1")
    for q in range(4):
        e(f"v_permlane16_swap_b32 v{AQ1[0]+q}, v{AQ1[1]+q}")
    QSH = WF + 24
    for q in range(8):
        e(f"v_mov_b32 v{QSH+q}, v{WF+16+q}")
    e("s_nop 1")
    for q in range(4):
        e(f"v_permlane16_swap_b32 v{QSH+q}, v{QSH+4+q}")
    e("v_mov_b32 v12, s32")
    e("v_mov_b32 v13, s33")
    for q in range(4):
        e(f"v_mov_b32 v{24+q}, 0")
    e("v_mov_b32 v28, 0x3f803f80")
    e("v_mov_b32 v29, 0x3f803f80")
    e("s_mov_b64 exec, 1")
    e("ds_write_b128 v12, v[24:27] offset:2560")
    e("ds_write_b64 v13, v[28:29] offset:2560")
    e("ds_write_b64 v13, v[28:29] offset:2816")
    e("s_mov_b64 exec, -1")
    post(c, C_LOC - CTL, 1)
    publish(c, "s30", 10, " sc1", "s85")
    stamp(c, 3)
    attention(c, cold, QSH)
    stamp(c, 5)
    gemm2(c, cold, "o", 10, wo_lds, 0, L_O, 40960, F_O, False, "s87", False,
          lambda cn: LO + cn, lambda cn: CO + cn, COX)
    stamp(c, 8)
    r = gemm1_main(c, cold, "1", "s87", None, lambda cn: L1 + cn, lambda cn: C1 + cn)
    stamp(c, 10)
    e(f"s_mul_i32 s28, s24, {192*512}")
    e("s_mul_i32 s29, s17, 6144")
    e("s_add_u32 s28, s28, s29")
    e(f"s_add_u32 s28, s28, {L_H}")
    e("s_add_u32 s29, s28, 4096")
    e("s_lshl_b32 s30, s24, 8")
    e("s_lshl_b32 s31, s17, 2")
    e("s_add_u32 s30, s30, s31")
    e(f"s_add_u32 s30, s30, {FL + F_H}")
    e("s_nop 1")
    def m1ep(kk, sc):
        for P in range(3):
            for m in range(2):
                o = WF + 8*P + 4*m
                scale_pack(kk, ACC, P, m, RSD, o, True)
                so, off = ("s28", 2048*P + 256*m) if P < 2 else ("s29", 256*m)
                kk.e(f"buffer_store_dwordx4 v[{o}:{o+3}], v0, s[4:7], {so} offen offset:{off}{sc}")
        publish(kk, "s30", 10, sc, "s85")
    dual(c, cold, m1ep)
    stamp(c, 11)
    gemm2(c, cold, "2", 24, m2_lds, X2B, L_H, 192*512, F_H, True, "s98",
          True, lambda cn: L2 + cn, lambda cn: C2 + cn, C2X)
    stamp(c, 14)
    next_layer(e)
    e("s_branch L_cw_layer")

    e = h.e
    QR, W1R = 8, 160
    NW1R = 7
    TR = 168
    h.label("L_hw_start")
    e("s_cmp_ge_u32 s70, 640")
    e("s_cbranch_scc1 L_hw_nojob")
    srd(h, 40, 26, D_*3*D_*2)
    colunit(h, "v24", "v26", "v27")
    e("v_mul_u32_u24 v31, 3840, v25")
    e("v_lshl_add_u32 v31, v26, 4, v31")
    e("s_and_b32 s58, s70, 15")
    e("s_lshr_b32 s59, s70, 4")
    e(f"s_mul_i32 s56, s59, {16*3840}")
    e("s_mul_i32 s60, s58, 80")
    e("s_add_u32 s56, s56, s60")
    e("s_lshl_b32 s61, s73, 12")
    e(f"s_add_u32 s61, s61, {STG - 16384}")
    for t in range(4):
        e(f"s_add_u32 m0, s61, {1024*t}")
        e("s_nop 0")
        e("buffer_load_dwordx4 v31, s[40:43], s56 offen lds")
        e(f"s_add_u32 s56, s56, {4*3840}")
    e(f"s_mul_i32 s55, s58, {WTQ_S}")
    e("s_lshr_b32 s60, s59, 1")
    e(f"s_mul_i32 s60, s60, {QSTEP}")
    e("s_add_u32 s55, s55, s60")
    e(f"s_add_u32 s55, s55, {WTQ}")
    e("s_and_b32 s60, s59, 1")
    e("s_mul_i32 s63, s60, 384")
    e("s_add_u32 s63, s63, s55")
    e("s_add_u32 s63, s63, 6144")
    e("s_lshl_b32 s60, s60, 9")
    e("s_add_u32 s55, s55, s60")
    e("s_add_u32 s53, s55, 4096")
    job_lanes(h)
    e("v_add_u32 v7, s61, v7")
    e("v_subrev_u32 v34, 4, v27")
    e("v_cmp_gt_u32 vcc, 12, v27")
    e("v_mul_u32_u24 v35, 768, v5")
    e("v_mul_u32_u24 v36, 192, v26")
    e("v_cndmask_b32 v34, v34, v27, vcc")
    e("v_lshlrev_b32 v34, 4, v34")
    e("v_add3_u32 v34, v34, v35, v36")
    e("s_waitcnt vmcnt(0)")
    stamp(h, 48)
    for cb in range(4):
        for rho in range(2):
            e(f"ds_read_b64_tr_b16 v[{48+4*cb+2*rho}:{49+4*cb+2*rho}], v7 offset:{rho*1024 + cb*256}")
    for cb in range(4):
        e(f"s_waitcnt lgkmcnt({6-2*cb})")
        d = 48 + 4*cb
        if cb < 2: e(f"buffer_store_dwordx4 v[{d}:{d+3}], v47, s[4:7], s55 offen offset:{2048*cb} sc1")
        elif cb == 2: e(f"buffer_store_dwordx4 v[{d}:{d+3}], v34, s[4:7], s63 offen sc1")
        else: e(f"buffer_store_dwordx4 v[{d}:{d+3}], v47, s[4:7], s53 offen sc1")
    e("s_mul_i32 s62, s58, 160")
    e("s_add_u32 s62, s62, s59")
    e("s_lshl_b32 s62, s62, 7")
    e(f"s_add_u32 s62, s62, {CSP}")
    colsum(h, [[48 + 4*cb] for cb in range(4)], "s62")
    epoch(h, "v255")
    e("s_lshl_b32 s56, s58, 6")
    e("s_add_u32 s56, s56, s59")
    e("s_lshl_b32 s56, s56, 7")
    e(f"s_add_u32 s56, s56, {FL + F_Q}")
    stamp(h, 46)
    publish(h, "s56", 42, " sc1", "s85")
    stamp(h, 47)
    h.label("L_hw_nojob")
    e("s_mov_b32 s64, s34")
    e("s_mov_b32 s65, s35")
    e("s_mov_b32 s66, 3072")
    e("s_mov_b32 s67, 0x00020000")
    e("s_lshl_b32 s71, s73, 10")
    e("s_waitcnt vmcnt(0)")
    post(h, C_PQ - CTL, 1)
    epoch(h, "v255")
    stamp(h, 49)
    def q_round_need(cn): return ((4*cn + 4) * 3840 + 4095) // 4096 - 1
    def q_write(r):
        b, off = divmod(r * 4096, 0xf000)
        if r == 37:
            e("s_cmp_ge_u32 s73, 2")
            lab = h.newlabel("L_q37")
            e(f"s_cbranch_scc1 {lab}")
        e(f"ds_write_b128 v{5+b}, v[{QR+4*r}:{QR+4*r+3}] offset:{off}")
        if r == 37: h.label(lab)
        for cn in range(10):
            if q_round_need(cn) == r: post(h, C_LAND - CTL, LQ + cn)
    def q_waddr():
        e("v_add_u32 v5, s71, v2")
        e("v_add_u32 v6, 0xf000, v5")
        e("v_add_u32 v7, 0x1e000, v5")
    known = {"c": -10**9}
    def need_cons(T, flush=None):
        if T is None or T <= known["c"]: return
        known["c"] = T
        if flush is None:
            spin(h, C_CONS - CTL, T, sleep=1)
            return
        lf = h.newlabel("L_cw"); lb = lf + "_b"
        e(cread(VT, C_CONS - CTL))
        e("s_waitcnt lgkmcnt(0)")
        chk(h, VT, T, lf)
        h.label(lb)
        cold.label(lf)
        cold.e("s_waitcnt vmcnt(0)")
        post(cold, C_LAND - CTL, flush)
        spin(cold, C_CONS - CTL, T, sleep=1)
        cold.e(f"s_branch {lb}")
    def touch(src_s, off):
        e(f"s_add_u32 s24, {src_s}, {off}")
        h.vmem("buffer_load_dword v0, v4, s[4:7], s24 offen sc1", "t")
    def gpoll(loads, L):
        e("s_mov_b32 s90, 0")
        h.label(L)
        for n, (va, so) in enumerate(loads):
            e(f"buffer_load_dword v{252+n}, {va}, s[4:7], {so} offen sc1")
        e("s_add_u32 s90, s90, 1")
        e(f"s_cmp_gt_u32 s90, {SPIN_MAX}")
        e(f"s_cbranch_scc1 {L}_out")
        e("s_waitcnt vmcnt(0)")
        e("v_subrev_u32 v0, s85, v252")
        for n in range(1, len(loads)):
            e(f"v_subrev_u32 v{TR}, s85, v{252+n}")
            e(f"v_max_u32 v0, v0, v{TR}")
        e("v_cmp_lt_u32 vcc, 15, v0")
        e(f"s_cbranch_vccz {L}_out")
        e(f"s_sleep {OPT.get('gsleep', 2)}")
        e(f"s_branch {L}")
        h.label(L + "_out")
    e("s_lshl_b32 s26, s16, 2")
    e("s_cmp_eq_u32 s73, 0")
    e("s_cbranch_scc0 L_hw_r1")
    e(f"v_min_u32 v{TR+1}, 39, v1")
    e(f"v_lshlrev_b32 v{TR+1}, 7, v{TR+1}")
    e("s_lshl_b32 s24, s17, 13")
    e(f"s_add_u32 s24, s24, {FL + F_Q}")
    gpoll([(f"v{TR+1}", "s24")], "L_hw_gq")
    spin(h, C_PQ - CTL, 1, sleep=1)
    e("v_mov_b32 v252, 1")
    e(f"ds_write_b8 v{VC}, v252 offset:{64+C_GO-CTL}")
    e("s_branch L_hw_rj")
    h.label("L_hw_r1")
    e("s_cmp_eq_u32 s73, 1")
    e("s_cbranch_scc0 L_hw_r2")
    touch("s74", 0)
    touch("s74", 4096)
    e("s_lshl_b32 s25, s3, 11")
    e("s_mov_b32 exec_hi, 0")
    touch("s25", FL)
    e("s_mov_b32 exec_hi, -1")
    e("s_branch L_hw_rj")
    h.label("L_hw_r2")
    e("s_cmp_eq_u32 s73, 3")
    e("s_cbranch_scc0 L_hw_nohi")
    e("s_lshl_b32 s24, s3, 5")
    e("s_add_u32 s24, s24, s99")
    e("s_lshl_b32 s24, s24, 7")
    e(f"s_add_u32 s24, s24, {FL + F_HI}")
    e("s_add_u32 s27, s85, s79")
    publish(h, "s24", 252, " sc1", "s27")
    h.label("L_hw_nohi")
    if OPT.get("ttime", 1) == 1: spin(h, C_PQ - CTL, 1, sleep=2)
    if OPT.get("ttime", 1) == 2: e("s_branch L_hw_rj")
    e("s_sub_u32 s25, s73, 2")
    e("s_lshl_b32 s25, s25, 1")
    e("s_add_u32 s26, s26, s25")
    for n in range(2):
        e(f"s_mul_i32 s27, s26, {192*512}")
        e("s_mul_i32 s25, s17, 6144")
        e("s_add_u32 s27, s27, s25")
        touch("s27", L_H)
        e("s_mov_b32 exec_hi, 0")
        touch("s27", L_H + 4096)
        e("s_mul_i32 s27, s26, 40960")
        e("s_mul_i32 s25, s17, 2560")
        e("s_add_u32 s27, s27, s25")
        e("s_mov_b32 exec_hi, 0xff")
        touch("s27", L_O)
        e("s_mov_b32 exec_hi, -1")
        e("s_add_u32 s26, s26, 1")
    h.label("L_hw_rj")
    h.reset_vm()
    q_waddr()
    e(f"s_mul_i32 s26, s17, {WTQ_S}")
    e(f"s_add_u32 s26, s26, {WTQ}")
    e("s_add_u32 s26, s26, s71")
    spin(h, C_GO - CTL, 1, sleep=1)
    stamp(h, 50)
    def cs_loads(base, n, dst, tag):
        e("v_and_b32 v172, 31, v1")
        e("v_lshlrev_b32 v172, 2, v172")
        e("v_lshrrev_b32 v174, 5, v1")
        e("v_lshl_add_u32 v172, v174, 7, v172")
        e(f"s_mul_i32 s25, s17, {4*5120}")
        e("s_mul_i32 s27, s73, 5120")
        e("s_add_u32 s25, s25, s27")
        e(f"s_add_u32 s25, s25, {base}")
        for i in range(n):
            if i == 16: e("s_add_u32 s25, s25, 4096")
            h.vmem(f"buffer_load_dword v{dst+i}, v172, s[4:7], s25 offen offset:{256*(i%16)} sc1", tag)
    def aug_make(b, n, withb1):
        e("s_mov_b32 s60, -1")
        e("s_mov_b32 s61, 0")
        for i in range(1, n): e(f"v_add_f32 v{b}, v{b}, v{b+i}")
        e(f"v_mov_b32 v{b+1}, v{b}")
        e("s_nop 1")
        e(f"v_permlane32_swap_b32 v{b}, v{b+1}")
        e("s_nop 1")
        e(f"v_add_f32 v{b}, v{b}, v{b+1}")
        e(f"v_cvt_pk_bf16_f32 v{b+1}, v{b}, v{b}")
        e(f"v_and_b32 v{b+2}, 0xffff0000, v{b+1}")
        e(f"v_sub_f32 v{b+2}, v{b}, v{b+2}")
        e(f"v_cvt_pk_bf16_f32 v{b+4}, v{b}, v{b+2}")
        e(f"v_and_b32 v{b+5}, 0xffff, v{b+1}")
        if withb1:
            e(f"v_lshl_or_b32 v{b+5}, v175, 16, v{b+5}")
            e(f"v_cndmask_b32 v{b+6}, 0, v175, s[60:61]")
        else:
            e(f"v_mov_b32 v{b+6}, 0")
        e(f"v_mov_b32 v{b+7}, 0")
        e(f"v_cndmask_b32 v{b+4}, 0, v{b+4}, s[60:61]")
        e(f"v_cndmask_b32 v{b+5}, 0, v{b+5}, s[60:61]")
    LAG = OPT.get("qlag", 8)
    for r in range(38 + LAG):
        if r < 38:
            h.vmem(f"buffer_load_dwordx4 v[{QR+4*r}:{QR+4*r+3}], v2, s[4:7], s26 offen sc1", ("q", r))
            e("s_add_u32 s26, s26, 4096")
        if r == 30: cs_loads(CSP, 20, 200, "cs")
        if r >= LAG:
            if (r - LAG + 1) * 4096 > STG and (r - LAG) * 4096 <= STG: spin(h, C_PG - CTL, 1, sleep=1)
            h.wait(vm=("q", r - LAG))
            q_write(r - LAG)
    e("s_lshl_b32 s27, s73, 9")
    e("v_add_u32 v192, s27, v2")
    e(f"v_add_u32 v193, {QAUG}, v192")
    aug_make(200, 20, False)
    e("s_mov_b32 exec_hi, 0")
    e("buffer_store_dwordx4 v[204:207], v192, s[4:7], s74 offen")
    e("ds_write_b128 v193, v[204:207]")
    e("s_mov_b32 exec_hi, -1")
    post(h, C_LAND - CTL, LQ + 10)
    stamp(h, 1)
    e(f"v_and_b32 v{TR+1}, 31, v1")
    e(f"v_lshlrev_b32 v{TR+1}, 7, v{TR+1}")
    e("s_lshl_b32 s24, s3, 12")
    e(f"s_add_u32 s24, s24, {FL + F_HI}")
    e("s_cmp_lg_u32 s73, 0")
    e("s_cbranch_scc1 L_hw_nopur")
    gpoll([(f"v{TR+1}", "s24")], "L_hw_gh")
    e("s_add_u32 s27, s85, s79")
    e("v_cmp_ne_u32 vcc, s27, v252")
    e("s_or_b64 vcc, vcc, vcc")
    e("s_cselect_b32 s22, 1, 0")
    if FORCE_SLOW: e("s_mov_b32 s22, 1")
    e("v_mov_b32 v170, s22")
    e(f"ds_write_b8 v{VC}, v170 offset:{64+C_MODE-CTL}")
    e(f"ds_write_b8 v{VC}, v170 offset:{128+C_MODE-CTL}")
    h.label("L_hw_nopur")
    def late_setup():
        e("s_cmp_lg_u32 s23, 0")
        e("s_cbranch_scc1 L_hw_nolate")
        e("s_cmp_ge_u32 s73, 2")
        e("s_cselect_b32 s25, 47, 19")
        e(f"v_min_u32 v{TR+1}, s25, v1")
        e("s_cmp_eq_u32 s73, 1")
        e("s_cselect_b32 s25, 11, 10")
        e(f"v_lshlrev_b32 v{TR+1}, s25, v{TR+1}")
        e("s_add_u32 s24, s20, 480")
        e("s_cselect_b32 s24, s17, s24") if False else None
        e("s_cmp_eq_u32 s73, 1")
        e("s_cselect_b32 s24, s17, s24")
        e("s_add_u32 s25, s20, 320")
        e("s_cmp_eq_u32 s73, 0")
        e("s_cselect_b32 s24, s25, s24")
        e("s_lshl_b32 s24, s24, 7")
        e(f"s_add_u32 s24, s24, {FL + F_J}")
        gpoll([(f"v{TR+1}", "s24")], "L_hw_gg")
        post(h, C_PQ - CTL, 2)
        spin(h, C_PQ - CTL, 2, sleep=1)
        cs_loads(CSP + 16*40*512, 10, 220, "cs")
        e("v_bfe_u32 v173, v1, 2, 2")
        e("s_lshl_b32 s25, s73, 2")
        e("v_add_u32 v173, s25, v173")
        e("v_bfe_u32 v174, v1, 4, 1")
        e("v_lshl_add_u32 v173, v173, 1, v174")
        e("v_and_b32 v174, 3, v1")
        e("v_lshl_add_u32 v173, v173, 2, v174")
        e("v_lshlrev_b32 v173, 1, v173")
        e("s_mul_i32 s27, s17, 192")
        e("buffer_load_ushort v175, v173, s[64:67], s27 offen")
        h.label("L_hw_nolate")
    def late_finish():
        aug_make(220, 10, True)
        e("s_lshl_b32 s27, s73, 9")
        e("v_add_u32 v193, s27, v2")
        e("s_add_u32 s27, s74, 4096")
        e("s_mov_b32 exec_hi, 0")
        e("buffer_store_dwordx4 v[224:227], v193, s[4:7], s27 offen")
        e("s_mov_b32 exec_hi, -1")
        e("s_waitcnt vmcnt(0)")
    if OPT.get("early"):
        late_setup()
        e("s_waitcnt vmcnt(0)")
        late_finish()
    e("s_waitcnt vmcnt(0) lgkmcnt(0)")
    h.reset_vm()
    e(f"s_mul_i32 s26, s73, 3072")
    e("s_add_u32 s70, s76, s26")
    e(f"s_add_u32 s70, s70, {(10-NW1R)*4*3072}")
    def w1r_load(c_):
        e(f"s_add_u32 s26, s70, {c_*4*3072}")
        for u in range(3):
            r = W1R + 12*c_ + 4*u
            h.vmem(f"buffer_load_dwordx4 v[{r}:{r+3}], v2, s[4:7], s26 offen offset:{1024*u} sc1", "w1r")
    N1 = OPT.get("n1", 0)
    for c_ in range(N1): w1r_load(c_)
    e("s_branch L_hw_common")
    h.label("L_hw_layer1")
    known["c"] = -10**9
    stamp(h, 0)
    q_waddr()
    spin(h, C_CONS - CTL + PREV, C2 + 11, sleep=1)
    for r in range(38):
        if (r + 1) * 4096 > X2B >= r * 4096: spin(h, C_CONS - CTL + PREV, C2X, sleep=1)
        q_write(r)
        if r % 8 == 7: e("s_waitcnt lgkmcnt(4)")
    e("s_lshl_b32 s25, s73, 9")
    e(f"s_add_u32 m0, s25, {QAUG}")
    e("s_add_u32 s25, s25, s74")
    e("s_mov_b32 exec_hi, 0")
    e("buffer_load_dwordx4 v2, s[4:7], s25 offen sc1 lds")
    e("s_mov_b32 exec_hi, -1")
    e("s_waitcnt vmcnt(0)")
    post(h, C_LAND - CTL, LQ + 10)
    stamp(h, 1)
    if OPT.get("touch", 1):
        h.reset_vm()
        need_cons(CQ + 1)
        e("s_mul_i32 s25, s84, 25600")
        e("s_add_u32 s25, s25, s75")
        e("s_lshl_b32 s26, s73, 12")
        e("s_add_u32 s25, s25, s26")
        touch("s25", 0)
        need_cons(CQ + 3)
        touch("s25", 16384)
        e("s_mul_i32 s25, s83, 18432")
        e("s_add_u32 s25, s25, s76")
        e("s_add_u32 s25, s25, s26")
        need_cons(CQ + 5)
        touch("s25", 0)
        e("s_mul_i32 s25, s84, 4096")
        e("s_add_u32 s25, s25, s77")
        e("s_lshl_b32 s26, s73, 14")
        e("s_add_u32 s25, s25, s26")
        need_cons(CQ + 6)
        touch("s25", 0)
    h.label("L_hw_common")
    known["c"] = min(known["c"], -10**9)
    e("s_waitcnt vmcnt(0)")
    h.reset_vm()
    stamp(h, 2)
    e("s_lshl_b32 s26, s73, 1")
    e("s_lshl_b32 s27, s16, 2")
    e("s_add_u32 s27, s27, s26")
    e("s_sub_i32 s27, s27, 8")
    e(f"s_mul_i32 s30, s26, {TSK}")
    e(f"s_add_u32 s30, s30, {KB}")
    e(f"s_mul_i32 s68, s26, {TSV}")
    e(f"v_mul_u32_u24 v5, {TSK}, v1")
    e("v_add_u32 v5, s30, v5")
    e(f"v_mul_u32_u24 v0, {TSV}, v1")
    e("v_add_u32 v0, s68, v0")
    e("s_cmp_lt_i32 s27, 0")
    e("s_cselect_b32 s24, 0xf149, 0")
    e("v_mov_b32 v252, s24")
    e("v_mov_b32 v253, 0")
    e("v_mov_b32 v254, s24")
    e("v_mov_b32 v255, 0")
    e("v_mov_b32 v6, 0x3f803f80")
    e("v_mov_b32 v7, 0x3f803f80")
    need_cons(CQ + 10)
    e("s_mov_b64 exec, 3")
    e("ds_write_b128 v5, v[252:255] offset:2560")
    e("ds_write_b64 v0, v[6:7] offset:2560")
    e("ds_write_b64 v0, v[6:7] offset:2816")
    e("s_mov_b64 exec, -1")
    lneg = "L_hw_neg"; lhd = "L_hw_halo_done"
    e("s_cmp_lt_i32 s27, 0")
    e(f"s_cbranch_scc1 {lneg}")
    e("s_lshl_b32 s28, s27, 4")
    e("s_add_u32 s28, s28, s17")
    e("s_lshl_b32 s29, s28, 7")
    e("s_add_u32 s29, s29, s72")
    e(f"s_add_u32 s29, s29, {F_KV}")
    e("s_mul_i32 s28, s28, 5120")
    e("s_add_u32 s28, s28, s21")
    e(f"s_add_u32 s28, s28, {L_KV}")
    L = "L_hw_kvpoll"
    e("v_lshlrev_b32 v5, 11, v1")
    e("s_mov_b64 exec, 3")
    e("s_mov_b32 s90, 0")
    h.label(L)
    e("buffer_load_dword v6, v5, s[4:7], s29 offen sc1")
    e("s_add_u32 s90, s90, 1")
    e(f"s_cmp_gt_u32 s90, {SPIN_MAX}")
    e(f"s_cbranch_scc1 {L}_out")
    e("s_waitcnt vmcnt(0)")
    e("v_subrev_u32 v6, s85, v6")
    e("v_cmp_lt_u32 vcc, 15, v6")
    e(f"s_cbranch_vccnz {L}")
    h.label(L + "_out")
    e("s_mov_b64 exec, -1")
    stamp(h, 3)
    for part in range(2):
        for n in range(2):
            e(f"s_add_u32 m0, {('s30', 's68')[part]}, {n*(TSK, TSV)[part]}")
            e(f"s_add_u32 s31, s28, {n*16*5120 + part*2560}")
            e("buffer_load_dwordx4 v2, s[4:7], s31 offen sc1 lds")
            e("buffer_load_dwordx4 v2, s[4:7], s31 offen offset:1024 sc1 lds")
            e("s_mov_b32 exec_hi, 0")
            e("buffer_load_dwordx4 v2, s[4:7], s31 offen offset:2048 sc1 lds")
            e("s_mov_b32 exec_hi, -1")
    e("s_waitcnt vmcnt(6)")
    post(h, C_HK - CTL, 1)
    e("s_waitcnt vmcnt(0)")
    post(h, C_HV - CTL, 1)
    e(f"s_branch {lhd}")
    h.label(lneg)
    e("v_add_u32 v5, s30, v2")
    e("v_add_u32 v6, s68, v2")
    e("v_mov_b32 v252, 0")
    e("v_mov_b32 v254, 0")
    for n in range(2):
        for u in (0, 1024, 1536):
            e(f"ds_write_b128 v5, v[252:255] offset:{n*TSK + u}")
            e(f"ds_write_b128 v6, v[252:255] offset:{n*TSV + u}")
    post(h, C_HK - CTL, 1)
    post(h, C_HV - CTL, 1)
    h.label(lhd)
    spin(h, C_HV - CTL, 1, sleep=1)
    if OPT.get("hwquiet"): spin(h, C_RD - CTL, 2, sleep=OPT["hwquiet"])
    stamp(h, 4)
    if not OPT.get("early"): late_setup()
    h.reset_vm()
    e("s_lshl_b32 s26, s16, 2")
    e("s_add_u32 s26, s26, s73")
    e("s_mul_i32 s24, s26, 40960")
    e("s_mul_i32 s25, s17, 2560")
    e("s_add_u32 s24, s24, s25")
    e(f"s_add_u32 s24, s24, {L_O}")
    e("s_mov_b32 exec_hi, 0xff")
    e("buffer_load_dword v0, v4, s[4:7], s24 offen sc1")
    e("s_mov_b32 exec_hi, -1")
    e(f"s_mul_i32 s69, s26, {192*512}")
    e("s_mul_i32 s25, s17, 6144")
    e("s_add_u32 s69, s69, s25")
    e(f"s_add_u32 s69, s69, {L_H}")
    DEPTH = 2
    def stream(src, blk, chunks, nblk, ldsf, land0, consf, extra={}, preflush=False):
        e(f"s_mul_i32 s25, s73, {blk}")
        e(f"s_add_u32 s26, {src}, s25")
        pend = []
        for cn in chunks:
            b0 = 4 * cn
            nb = min(4, nblk - b0)
            need_cons(consf(cn), land0 + pend[-1] if pend else None)
            addrs = [ldsf(b0 + i) for i in range(nb)]
            lin = all(addrs[i] == addrs[0] + i*blk for i in range(nb))
            L = None
            if nb < 4:
                L = h.newlabel("L_nb")
                e(f"s_cmp_ge_u32 s73, {nb}")
                e(f"s_cbranch_scc1 {L}")
            if lin:
                e(f"s_add_u32 s27, s25, {addrs[0]}")
            else:
                e(f"s_mov_b32 s27, {addrs[0]}")
                for i in range(1, nb):
                    e(f"s_cmp_eq_u32 s73, {i}")
                    e(f"s_cselect_b32 s27, {addrs[i]}, s27")
            e("s_mov_b32 m0, s27")
            e(f"s_add_u32 s28, s26, {b0*blk}")
            nfull = blk // 1024
            for u in range(min(nfull, 4)):
                h.vmem(f"buffer_load_dwordx4 v2, s[4:7], s28 offen offset:{1024*u} sc1 lds", ("b", cn))
            if nfull == 5:
                e("s_add_u32 m0, s27, 4096")
                e("s_add_u32 s28, s28, 4096")
                h.vmem("buffer_load_dwordx4 v2, s[4:7], s28 offen sc1 lds", ("b", cn))
            if L: h.label(L)
            pend.append(cn)
            for tc in extra.get(cn, []): tc()
            if len(pend) >= DEPTH:
                d = pend.pop(0)
                if L: e("s_waitcnt vmcnt(0)")
                else: h.wait(vm=("b", d))
                post(h, C_LAND - CTL, land0 + d)
        return pend
    def flush(land0, pend):
        if pend:
            e("s_waitcnt vmcnt(0)")
            post(h, C_LAND - CTL, land0 + pend[-1])
        h.reset_vm()
    p = stream("s75", 5120, range(4), 20, wo_lds, LO, lambda cn: None)
    flush(LO, p)
    stamp(h, 5)
    e("s_cmp_lg_u32 s23, 0")
    e("s_cbranch_scc1 L_hw_now1r")
    if not OPT.get("early"): late_finish()
    for c_ in range(N1, NW1R): w1r_load(c_)
    h.label("L_hw_now1r")
    touch("s69", 0)
    e("s_mov_b32 exec_hi, 0")
    touch("s69", 4096)
    e("s_mov_b32 exec_hi, -1")
    if OPT.get("touch", 1):
        e("s_cmp_eq_u32 s23, 0")
        e("s_cbranch_scc1 L_hw_now2t")
        e("s_mul_i32 s25, s84, 4096")
        e("s_add_u32 s25, s25, s77")
        e("s_lshl_b32 s26, s73, 14")
        e("s_add_u32 s25, s25, s26")
        for n in range(1, 1 + OPT.get("w2t", 3)): touch("s25", n*65536)
        h.label("L_hw_now2t")
    h.reset_vm()
    spin(h, C_RD - CTL, 1, sleep=1)
    p = stream("s75", 5120, [4], 20, wo_lds, LO, lambda cn: None)
    flush(LO, p)
    p = stream("s76", 3072, range(2), 41, m1_lds, L1, lambda cn: None)
    flush(L1, p)
    spin(h, C_RD - CTL, 2, sleep=1)
    need_cons(CO + OPT.get("m1c2", 0))
    p = stream("s76", 3072, [2], 41, m1_lds, L1, lambda cn: None)
    flush(L1, p)
    stamp(h, 6)
    def cons_1(cn):
        ov = [b for b in range(20) for x in range(4*cn, min(41, 4*cn + 4)) if wo_lds(b) < m1_lds(x) + 3072 and wo_lds(b) + 5120 > m1_lds(x)]
        return CO + max(ov) // 4
    p = stream("s76", 3072, range(3, 10 - NW1R), 40, m1_lds, L1, cons_1)
    flush(L1, p)
    for cn in range(10 - NW1R, 10):
        need_cons(cons_1(cn))
        addrs = [m1_lds(4*cn + i) for i in range(4)]
        e(f"s_mov_b32 s27, {addrs[0]}")
        for i in range(1, 4):
            e(f"s_cmp_eq_u32 s73, {i}")
            e(f"s_cselect_b32 s27, {addrs[i]}, s27")
        e("v_add_u32 v5, s27, v2")
        for u in range(3):
            r = W1R + 12*(cn-10+NW1R) + 4*u
            e(f"ds_write_b128 v5, v[{r}:{r+3}] offset:{1024*u}")
        post(h, C_LAND - CTL, L1 + cn)
        e("s_waitcnt lgkmcnt(4)")
    need_cons(cons_1(10))
    e("s_lshl_b32 s25, s73, 9")
    e(f"s_add_u32 m0, s25, {m1_lds(40)}")
    e("s_add_u32 s25, s25, s74")
    e("s_add_u32 s25, s25, 4096")
    e("s_mov_b32 exec_hi, 0")
    e("buffer_load_dwordx4 v2, s[4:7], s25 offen sc1 lds")
    e("s_mov_b32 exec_hi, -1")
    flush(L1, [10])
    stamp(h, 7)
    def cons_2(cn):
        need = COX
        if OPT.get("m2start") is not None: need = max(need, C1 + OPT["m2start"])
        for b in range(2*cn, 2*cn + 2):
            if b >= R2:
                need = max(need, C2 + (b - R2) // 2)
            else:
                last = _slot_free(SLOTS[b])
                if last >= 0: need = max(need, C1 + last // 4)
        return need
    t2 = {}
    for cn, ix in ((0, 8), (3, 9), (6, 10), (7, 11), (9, 12)):
        t2.setdefault(cn, []).append(lambda ix=ix: stamp(h, ix))
    p = stream("s77", 5120, range(12), 48, m2_lds, L2, cons_2, t2)
    flush(L2, p)
    stamp(h, 13)
    next_layer(e)
    e("s_cmp_lt_u32 s23, 2")
    e("s_cbranch_scc1 L_hw_layer1")
    e("s_branch L_mega_fin")

    fin = St("fin")
    fin.label("L_mega_fin")
    fin.e("s_xor_b32 s24, s18, 4")
    fin.e("s_or_b32 s24, s2, s24")
    fin.e("s_cmp_lg_u32 s24, 0")
    fin.e("s_cbranch_scc1 L_noep")
    fin.e("s_mov_b64 exec, -1")
    fin.e("v_lshlrev_b32 v4, 7, v1")
    fin.e("s_add_u32 s25, s97, 1")
    for n in range(4):
        fin.e(f"s_mov_b32 s24, {FL + F_HI + n*8192}")
        fin.e("s_mov_b32 s90, 0")
        fin.label(f"L_fin_hi{n}")
        fin.e("buffer_load_dword v5, v4, s[4:7], s24 offen sc1")
        fin.e("s_add_u32 s90, s90, 1")
        fin.e(f"s_cmp_gt_u32 s90, {SPIN_MAX}")
        fin.e(f"s_cbranch_scc1 L_fin_hi{n}_out")
        fin.e("s_waitcnt vmcnt(0)")
        fin.e("v_subrev_u32 v5, s25, v5")
        fin.e("v_cmp_lt_u32 vcc, 15, v5")
        fin.e(f"s_cbranch_vccnz L_fin_hi{n}")
        fin.label(f"L_fin_hi{n}_out")
    fin.e("s_add_u32 s96, s96, 1")
    fin.e("v_mov_b32 v4, 0")
    fin.e("v_mov_b32 v5, s96")
    fin.e(f"s_mov_b32 s24, {FL + F_EP}")
    fin.e("s_mov_b64 exec, 1")
    fin.e("buffer_store_dword v5, v4, s[4:7], s24 offen sc1")
    fin.label("L_noep")
    if PROF:
        e = fin.e
        e("s_mov_b64 exec, -1")
        e("s_waitcnt vmcnt(0)")
        e("s_mov_b32 s95, 16")
        stamp(fin, 15)
        e("s_memrealtime s[92:93]")
        e("s_waitcnt lgkmcnt(0)")
        e("v_writelane_b32 v3, s88, 32")
        e("v_writelane_b32 v3, s92, 33")
        e("v_writelane_b32 v3, s22, 34")
        e("s_lshl_b32 s24, s2, 3")
        e("s_add_u32 s24, s24, s18")
        e("s_lshl_b32 s24, s24, 8")
        e(f"s_add_u32 s24, s24, {WS_PROF}")
        e("v_lshlrev_b32 v4, 2, v1")
        e("buffer_store_dword v3, v4, s[4:7], s24 offen")
    fin.label("L_mega_end")
    fin.e("s_endpgm")
    return top.text() + c.text() + h.text() + fin.text() + cold.text()


def main(out_path):
    ref = open(f"cdna_kernels/{NAME}.s.ref").read().split("\n")
    hdr = [l for l in ref if l.startswith(";") and "@launch" not in l and "Override launch" not in l and "grid=ceil" not in l]
    mega = gen_mega()
    kn = NAME + "_kernel"
    out = "\n".join(hdr) + "\n"
    if OPT.get("list"):
        out += f"; @launch kernel={kn} grid=(256,1,1) block=(512,1,1) lds=163840\n"
    else:
        out += f"; @launch grid=(256,1,1) block=(512,1,1) lds=163840\n"
    out += '.amdgcn_target "amdgcn-amd-amdhsa--gfx950"\n.text\n'
    out += ".p2align 8\nL_code_begin:\n"
    out += kernel_header(kn) + mega
    out += "L_code_end:\n"
    out += '.section .rodata,"a"\n'
    out += descriptor(kn, 256, 102)
    open(out_path, "w").write(out)

if __name__ == "__main__":
    for a in sys.argv[2:]:
        if a == "prof": PROF = True
        if a == "slow": FORCE_SLOW = True
        if "=" in a: OPT[a.split("=")[0]] = int(a.split("=")[1])
    main(sys.argv[1] if len(sys.argv) > 1 else f"cdna_kernels/{NAME}.s")
```

```python
import sys, math, struct
from asmlib import *

NAME = "interleave_layers__sliding_block__dense_activation_squared_relu__prompt"
S_, D_, F_ = 2048, 640, 1536
KA_X, KA_WQKV, KA_WO, KA_W1, KA_B1, KA_W2, KA_B2, KA_OUT, KA_DBG, KA_WS = 0, 8, 16, 32, 40, 48, 56, 64, 72, 80
L_XA, L_O, L_H, L_STA, L_KV = 0, 0x280000, 0x500000, 0xB00000, 0xB40000
LS = 0x500000
WTQ = L_KV + 2 * LS;     WTQ_S = 38 * 4096
WT1 = WTQ + 16 * WTQ_S;  WT1_S = 40 * 3072
WTO = WT1 + 16 * WT1_S;  WTO_S = 102400
WT2 = WTO + 8 * WTO_S;   WT2_S = 245760
AUGP = WT2 + 8 * WT2_S + 0x10000
CSP = AUGP + 256 * 8192
FL = CSP + 2 * 16 * 40 * 512
F_O, F_X, F_H, F_EP, F_KV = 0, 128, 192, 0x6000, 0x8000
F_X0 = 0x28000
F_Q = F_X0 + 1024 * 128
F_J = F_Q + 1024 * 128
F_HI = F_J + 1024 * 128
WS_END = FL + F_HI + 256 * 128
WS_PROF = 0x4000000
PROF = False
OPT = {"w2t": 0, "ttime": 2, "late": 0, "early": 2, "n1": 2, "lsr": 12, "hsc1": 1, "r1": 4, "r2": 2, "jpro": 1, "touch": 0}
FORCE_SLOW = False
SPIN_MAX = 200000

def f32bits(x): return struct.unpack("<I", struct.pack("<f", x))[0]

def srd(k, d, lo, nbytes):
    k.e(f"s_mov_b32 s{d}, s{lo}")
    k.e(f"s_mov_b32 s{d+1}, s{lo+1}")
    k.e(f"s_mov_b32 s{d+2}, {nbytes}")
    k.e(f"s_mov_b32 s{d+3}, 0x00020000")

class St(K):
    def __init__(self, name):
        super().__init__(name)
        self.dq = []
    def reset_vm(self): self.vm = []
    def reset_ds(self): self.dq = []; self.dcov = 0
    def ds(self, s, tag=None):
        self.e(s); self.dq.append(tag)
    def n_ds(self, tag):
        last = max(i for i, t in enumerate(self.dq) if t == tag)
        n = len(self.dq) - 1 - last
        assert n <= 15
        return n
    def n_vm(self, tag):
        last = max(i for i, t in enumerate(self.vm) if t == tag)
        return min(63, len(self.vm) - 1 - last)
    def ensure(self, tag, upto_all=False):
        last = max(i for i, t in enumerate(self.dq) if t == tag)
        if last < getattr(self, "dcov", 0): return
        if upto_all: last = len(self.dq) - 1
        n = len(self.dq) - 1 - last
        assert n <= 15
        self.e(f"s_waitcnt lgkmcnt({n})")
        self.dcov = last + 1
    def wait(self, vm=None, ds=None):
        p = []
        if vm is not None: p.append(f"vmcnt({self.n_vm(vm)})")
        if ds is not None: p.append(f"lgkmcnt({self.n_ds(ds)})")
        self.e("s_waitcnt " + " ".join(p))

def stamp(k, idx):
    if not PROF: return
    k.e("s_memrealtime s[92:93]" if OPT.get("rt") else "s_memtime s[92:93]")
    k.e("s_waitcnt lgkmcnt(0)")
    k.e(f"s_add_u32 s94, s95, {idx}")
    k.e("s_mov_b32 m0, s94")
    k.e("s_nop 0")
    k.e("v_writelane_b32 v3, s92, m0")

def poll(k, soff, nflags, tmpv, thr, sh=2):
    e = k.e
    L = k.newlabel("L_poll")
    e(f"v_lshlrev_b32 v{tmpv}, {sh}, v1")
    e(f"s_mov_b64 exec, {(1 << nflags) - 1:#x}")
    e("s_mov_b32 s90, 0")
    k.label(L)
    e(f"buffer_load_dword v{tmpv+1}, v{tmpv}, s[4:7], {soff} offen sc1")
    e("s_add_u32 s90, s90, 1")
    e(f"s_cmp_gt_u32 s90, {SPIN_MAX}")
    e(f"s_cbranch_scc1 {L}_out")
    e("s_waitcnt vmcnt(0)")
    e(f"v_subrev_u32 v{tmpv+1}, {thr}, v{tmpv+1}")
    e(f"v_cmp_lt_u32 vcc, 15, v{tmpv+1}")
    e(f"s_cbranch_vccnz {L}")
    k.label(L + "_out")
    e("s_mov_b64 exec, -1")
    k.reset_vm()

def publish(k, soff, tmpv, sc, val, n=0):
    e = k.e
    e(f"v_mov_b32 v{tmpv}, 0")
    e(f"v_mov_b32 v{tmpv+1}, {val}")
    e(f"s_waitcnt vmcnt({n})")
    e("s_mov_b64 exec, 1")
    e(f"buffer_store_dword v{tmpv+1}, v{tmpv}, s[4:7], {soff} offen{sc}")
    e("s_mov_b64 exec, -1")
    k.reset_vm()

def pend_pub(k, cold, n=0):
    dual(k, cold, lambda kk, sc: publish(kk, "s80", 10, sc, "s81", n))

def dual(k, cold, fn, cond="s22"):
    ls = k.newlabel("L_slow"); lb = k.newlabel("L_back")
    k.e(f"s_cmp_lg_u32 {cond}, 0")
    k.e(f"s_cbranch_scc1 {ls}")
    fn(k, "")
    k.label(lb)
    cold.label(ls)
    fn(cold, " sc1")
    cold.e(f"s_branch {lb}")

CTL = 163840 - 128
C_LAND, C_CONS, C_ATT, C_ATT2, C_XF, C_LOC, C_HK, C_HV, C_RD, C_MODE = CTL, CTL + 4, CTL + 8, CTL + 12, CTL + 16, CTL + 20, CTL + 24, CTL + 28, CTL + 32, CTL + 48
C_PQ, C_PG, C_GO = C_ATT, C_ATT2, CTL + 36
VC, VB_, VT = 248, 249, 250
PREV = -64

def cread(reg, off): return f"ds_read_u8 v{reg}, v{VC} offset:{64 + off}"
def chk(k, reg, T, fail):
    k.e(f"v_cmp_gt_u32 vcc, {T}, v{reg}")
    k.e(f"s_cbranch_vccnz {fail}")

def spin(k, off, T, sleep=0):
    L = k.newlabel("L_spin")
    k.e("s_mov_b32 s90, 0")
    k.label(L)
    k.e(cread(VT, off))
    k.e("s_add_u32 s90, s90, 1")
    k.e(f"s_cmp_gt_u32 s90, {SPIN_MAX*8}")
    k.e(f"s_cbranch_scc1 {L}_out")
    if sleep: k.e(f"s_sleep {sleep}")
    k.e("s_waitcnt lgkmcnt(0)")
    chk(k, VT, T, L)
    k.label(L + "_out")
    k.e("s_waitcnt lgkmcnt(0)")
    k.reset_ds()

def post(k, off, T):
    k.e(f"v_mov_b32 v{VT+1}, {T}")
    k.ds(f"ds_write_b8 v{VB_}, v{VT+1} offset:{64 + off}")

def stats_ops(ST, XA, RSD, qscale=None):
    sv = []
    a = sv.append
    S, Q = ST, ST + 1
    a(f"v_pk_add_f32 v[{ST}:{ST+1}], v[{ST}:{ST+1}], v[{ST+2}:{ST+3}]")
    a(f"v_pk_add_f32 v[{ST+4}:{ST+5}], v[{ST+4}:{ST+5}], v[{ST+6}:{ST+7}]")
    a(f"v_pk_add_f32 v[{ST+2}:{ST+3}], v[{ST}:{ST+1}], v[{ST+4}:{ST+5}]")
    a(f"v_pk_add_f32 v[{ST}:{ST+1}], v[{ST}:{ST+1}], v[{ST+4}:{ST+5}]")
    a(f"v_permlane32_swap_b32 v{ST}, v{ST+2}")
    a(f"v_permlane32_swap_b32 v{ST+1}, v{ST+3}")
    a(f"v_pk_add_f32 v[{ST}:{ST+1}], v[{ST}:{ST+1}], v[{ST+2}:{ST+3}]")
    a(f"v_mul_f32 v{S}, {f32bits(-1.0/640):#x}, v{S}")
    a(f"v_mul_f32 v{Q}, {f32bits(1.0/640):#x}, v{Q}")
    a(f"v_fma_f32 v{Q}, -v{S}, v{S}, v{Q}")
    a(f"v_max_f32 v{Q}, 0, v{Q}")
    a(f"v_add_f32 v{Q}, {f32bits(1e-5):#x}, v{Q}")
    a(f"v_rsq_f32 v{RSD}, v{Q}")
    a(f"v_cvt_pk_bf16_f32 v{ST+4}, v{S}, v{S}")
    a(f"v_mul_f32 v{Q}, v{Q}, v{RSD}")
    a(f"v_mov_b32 v{RSD+1}, v{RSD}")
    a(f"v_and_b32 v{ST+2}, 0xffff0000, v{ST+4}")
    a(f"v_permlane16_swap_b32 v{RSD}, v{RSD+1}")
    a(f"v_sub_f32 v{ST+2}, v{S}, v{ST+2}")
    a(f"v_cvt_pk_bf16_f32 v{ST+5}, v{ST+2}, v{Q}")
    a(f"v_and_b32 v{ST+3}, 0xffff0000, v{ST+5}")
    a(f"v_sub_f32 v{ST+3}, v{Q}, v{ST+3}")
    a(f"v_lshrrev_b32 v{ST+6}, 16, v{ST+3}")
    for m in range(2):
        mk = ("s[36:37]", "s[34:35]")[m]
        for q in range(3): a(f"v_cndmask_b32 v{XA+4*m+q}, 0, v{ST+4+q}, {mk}")
        a(f"v_mov_b32 v{XA+4*m+3}, 0")
    if qscale is not None:
        for m in range(2):
            a(f"v_mul_f32 v{RSD+2+m}, {f32bits(qscale):#x}, v{RSD+m}")
        for m in range(2):
            a(f"v_cndmask_b32 v{RSD+4+m}, v{RSD+2+m}, v{RSD+m}, s[38:39]")
    return sv

CC = math.log2(math.e) / math.sqrt(20.0)
TSV = 2848
TSK = 2576
KB = 12 * TSV
QSTEP = 7680
QAUG = 20 * QSTEP
WOH = CTL - 18 * 5120
def wo_lds(b): return WOH + b*5120 if b < 18 else WOH - 10240 + (b-18)*5120
def m1_lds(b):
    if b < 8: return KB + 3072*b
    if b < 12: return 20480 + 3072*(b-8)
    return WOH + 3072*(b-12)
assert KB + 12*TSK <= WOH and KB + 8*3072 <= WOH - 10240 and 20480 + 4*3072 <= KB and m1_lds(40) + 3072 <= CTL
R2 = 15
def _slot_free(sl):
    lo, hi = sl*10240, sl*10240 + 10240
    ov = [b for b in range(41) if m1_lds(b) < hi and m1_lds(b) + 3072 > lo]
    return max(ov) if ov else -1
SLOTS = sorted(range(R2), key=lambda sl: (_slot_free(sl), sl))
def m2_lds(b): return SLOTS[(b >> 1) % R2] * 10240 + (b & 1) * 5120
X2S = (13, 14)
X2B = X2S[0] * 10240
assert all(SLOTS.index(sl) + R2 >= 24 for sl in X2S), SLOTS
LQ, LO, L1, L2 = 1, 12, 17, 28
CQ, CO, COX, C1, C2, C2X = 1, 12, 17, 18, 29, 41
MF16 = "v_mfma_f32_16x16x32_bf16"

def soff_table(k, base_s, n):
    for i in range(n):
        k.e(f"s_add_u32 s{40+i}, {base_s}, {4096*i}")

def mainloop(k, cold, NT, nsteps, wread, xop, lda, nlda, pre, ring, land_T, cons_T, c0, events, opt, opt_from, ACC, WF):
    e = k.e
    LA = 10; RW = 11; WG = {8: 4, 6: 3, 5: 5}[NT]
    nops = nsteps * NT
    CH = 2 * NT
    def wreg(n): return WF + 4 * (n % RW)
    def cmp_(c):
        k.ensure(("ctl", c))
        e(f"v_cmp_gt_u32 vcc, {land_T(c)}, v{VT+2}")
    def check(c, full=True):
        T = land_T(c)
        lf = k.newlabel("L_lw"); lb = lf + "_b"
        if full: cmp_(c)
        e(f"s_cbranch_vccnz {lf}")
        k.label(lb)
        cold.label(lf)
        spin(cold, C_LAND - CTL, T)
        cold.e(f"s_branch {lb}")
    def ctlread(c): k.ds(cread(VT + 2, C_LAND - CTL), ("ctl", c))
    ev = {n: list(v) for n, v in events.items()}
    def busy(n): return bool(ev.get(n)) or (n + 1) % WG == 0 or (n + 1) % NT == 0
    def place(n, f, lo, hi):
        cands = sorted(range(max(lo, 0), min(hi, nops - 1) + 1), key=lambda x: (busy(x), abs(x - n)))
        ev.setdefault(cands[0], []).append(f)
        return cands[0]
    pre_ev = []
    nch = (nops + CH - 1) // CH
    for c in range(1, nch):
        dl = c * CH - LA - 1
        if dl < 0:
            pre_ev.append(c); continue
        if dl < 2:
            place(dl, lambda c=c: check(c), dl, dl); pre_ev.append(-c); continue
        p = place(dl, lambda c=c: check(c, False), dl - 1, dl)
        p = place(p - 1, lambda c=c: cmp_(c), p - 2, p - 1)
        CD = OPT.get("cd", 7)
        if p - CD < 0: pre_ev.append(-c)
        else: place(p - CD, lambda c=c: ctlread(c), p - CD, p - CD + 1)
    for c in range(nch):
        t = min((c + 1) * CH, nops) - 1 - LA
        t = max(t, 0)
        p = place(t + 1, lambda c=c: k.ds(f"ds_write_b8 v{VB_}, v{VT+1} offset:{64 + C_CONS - CTL}"), t + 1 if t + 1 > 0 else 1, t + 4)
        place(p - 1, lambda c=c: e(f"v_mov_b32 v{VT+1}, {cons_T(c)}"), max(p - 3, 0), p - 1)
    for i in range(2 * pre, nlda):
        s = i // 2 - pre
        n = s * NT + (1 if i % 2 == 0 else NT // 2 + 1)
        assert pre < ring
        place(n, lambda i=i: lda(i), s * NT + (0 if i % 2 == 0 else NT // 2), s * NT + (NT // 2 - 1 if i % 2 == 0 else NT - 1))
    k.reset_ds()
    ctlread(0)
    for i in range(min(2 * pre, nlda)): lda(i)
    check(0)
    for c in pre_ev:
        if c > 0:
            ctlread(c); check(c)
    for c in pre_ev:
        if c < 0: ctlread(-c)
    for n in range(LA): wread(n // NT, n % NT, wreg(n), ("w", n))
    for n in range(nops):
        s, T = divmod(n, NT)
        w = []
        if T == 0 and 2*s < nlda: w.append(f"vmcnt({k.n_vm(('a', 2*s + 1))})")
        if n % WG == 0:
            tag = ("w", min(n + WG - 1, nops - 1))
            last = max(i for i, t in enumerate(k.dq) if t == tag)
            if last >= k.dcov:
                cnt = len(k.dq) - 1 - last
                assert cnt <= 15
                w.append(f"lgkmcnt({cnt})"); k.dcov = last + 1
        if w: e("s_waitcnt " + " ".join(w))
        for m in range(2):
            acc = ACC + 8*T + 4*m
            csrc = "0" if (s == 0 and c0[m]) else f"v[{acc}:{acc+3}]"
            e(f"{MF16} v[{acc}:{acc+3}], v[{wreg(n)}:{wreg(n)+3}], {xop(s, m)}, {csrc}")
            t = n + LA
            if m == 0 and t < nops:
                wread(t // NT, t % NT, wreg(t), ("w", t))
        for f in ev.get(n, []): f()
        if opt and n >= opt_from and (not busy(n) or len(opt) > (nops - NT - 2 - n) // 2):
            e(opt.pop(0))
        if n == nops - NT - 2: assert not opt, len(opt)

def gemm1_main(k, cold, pfx, thr, qscale, land_T, cons_T):
    e = k.e
    NT = 8 if pfx == "q" else 6
    ST = 16; XA = 32; RSD = 40; WF = 48; ACC = 92; AR = 156; R = 11
    KS = 20
    e("s_lshl_b32 s24, s16, 2")
    e("s_add_u32 s24, s24, s18")
    e("s_mul_i32 s25, s24, 40960")
    e("s_lshl_b32 s26, s24, 11")
    e(f"s_add_u32 s26, s26, {L_STA}")
    e("s_lshl_b32 s27, s24, 8")
    e(f"s_add_u32 s27, s27, {FL + F_X}")
    if pfx == "q" and OPT.get("rot", 0):
        e("s_mul_i32 s28, s83, 20480")
        e("s_add_u32 s29, s25, s28")
        e("s_sub_u32 s28, s25, s28")
        for i in range(10):
            e(f"s_add_u32 s{40+i}, {'s29' if i < 5 else 's28'}, {4096*i}")
    else:
        soff_table(k, "s25", 10)
    e("s_mov_b32 s34, 0xffff0000")
    e("s_mov_b32 s35, 0")
    e("s_mov_b32 s36, 0xffff")
    e("s_mov_b32 s37, 0")
    e("s_mov_b32 s38, -1")
    e("s_mov_b32 s39, 0")
    for b in range(3):
        e(f"v_add_u32 v{4+b}, {b*0xf000}, v2")
    e("v_and_b32 v48, 15, v1")
    if pfx == "q":
        e("v_subrev_u32 v49, 4, v48")
        e("v_cmp_gt_u32 vcc, 12, v48")
        e("v_lshrrev_b32 v50, 4, v1")
        e("v_mul_u32_u24 v50, 192, v50")
        e("v_cndmask_b32 v49, v49, v48, vcc")
        e("v_lshl_add_u32 v49, v49, 4, v50")
        for b in range(3):
            e(f"v_add_u32 v{7+b}, {6144 + b*0xf000}, v49")
    e("v_lshlrev_b32 v46, 4, v48")
    e(f"v_add_u32 v46, {QAUG if pfx == 'q' else m1_lds(40)}, v46")
    if pfx == "q":
        e("s_lshl_b32 s28, s24, 11")
        e(f"s_add_u32 s28, s28, {FL + F_X0}")
        e("s_cmp_eq_u32 s23, 0")
        e("s_cselect_b32 s27, s28, s27")
        e("s_cselect_b32 s28, 7, 2")
        e("s_cbranch_scc1 L_q_nopub")
        pend_pub(k, cold)
        stamp(k, 0)
        k.label("L_q_nopub")
        poll(k, "s27", 16, 10, thr, "s28")
    else:
        pend_pub(k, cold)
        stamp(k, 8)
        poll(k, "s27", 16, 10, thr)
    stamp(k, {"q": 1, "1": 9}[pfx])
    def areg(s, m): return AR + 8 * (s % R) + 4 * m
    def lda(i):
        s, m = divmod(i, 2)
        a = areg(s, m)
        k.vmem(f"buffer_load_dwordx4 v[{a}:{a+3}], v0, s[4:7], s{40+s//2} offen offset:{2048*(s%2) + 256*m} sc1", ("a", i))
    QPOS = {0: 0, 1: 1, 2: 2, 3: 3, 6: 4, 7: 5}
    def wread(s, T, dst, tag):
        if s == KS:
            k.ds(f"ds_read_b128 v[{dst}:{dst+3}], v46 offset:{256*T}", tag)
        elif pfx == "q":
            b, r = divmod(s * QSTEP, 0xf000)
            if T in (4, 5): k.ds(f"ds_read_b128 v[{dst}:{dst+3}], v{7+b} offset:{r + 768*(T-4)}", tag)
            else: k.ds(f"ds_read_b128 v[{dst}:{dst+3}], v{4+b} offset:{r + 1024*QPOS[T]}", tag)
        else:
            b, r = divmod(m1_lds(2*s + T // 3), 0xf000)
            k.ds(f"ds_read_b128 v[{dst}:{dst+3}], v{4+b} offset:{r + 1024*(T % 3)}", tag)
    def xop(s, m):
        a = areg(s, m) if s < KS else XA + 4*m
        return f"v[{a}:{a+3}]"
    sv = stats_ops(ST, XA, RSD, qscale)
    JS, JF = OPT.get("jst", 1), OPT.get("jfl", 10)
    def jhook(s):
        if True:
            if s == JS: assert ("a", 2*JF) not in k.vm
            lf = k.newlabel("L_js"); lb = lf + "_b"
            e("s_cmp_lt_u32 s101, 864")
            e(f"s_cbranch_scc1 {lf}")
            k.label(lb)
            cold.label(lf)
            if s != JF:
                for hs in range(2):
                    for p in range(3):
                        d = 16 + 12*hs + 4*p
                        if p < 2: cold.e(f"buffer_store_dwordx4 v[{d}:{d+3}], v47, s[4:7], s55 offen offset:{2048*p + 512*hs} sc1")
                        else: cold.e(f"buffer_store_dwordx4 v[{d}:{d+3}], v15, s[4:7], s55 offen offset:{512*hs} sc1")
                cold.e("s_cmp_ge_u32 s101, 320")
                cold.e(f"s_cbranch_scc1 {lb}")
                cold.e("buffer_store_dword v12, v14, s[4:7], s62 offen sc1")
                cold.e("s_add_u32 s62, s62, 10240")
                cold.e("buffer_store_dword v13, v14, s[4:7], s62 offen sc1")
            else:
                cold.e("v_mov_b32 v10, 0")
                cold.e("v_mov_b32 v11, s85")
                cold.e("s_mov_b64 exec, 1")
                cold.e("buffer_store_dword v11, v10, s[4:7], s100 offen sc1")
                cold.e("s_mov_b64 exec, -1")
                cold.e("s_mov_b32 s101, 9999")
            cold.e(f"s_branch {lb}")
    ev = {}
    if pfx == "q":
        if OPT.get("jpro"):
            jhook(JF)
        else:
            ev[JS*NT] = [lambda: jhook(JS)]
            ev[JF*NT] = [lambda: jhook(JF)]
    for m in range(2):
        ev[(2+m)*NT + 2] = [lambda m=m: k.vmem(f"buffer_load_dwordx4 v[{ST+4*m}:{ST+4*m+3}], v2, s[4:7], s26 offen offset:{1024*m} sc1", "st")]
    ev[7*NT] = [lambda: k.wait(vm="st")]
    mainloop(k, cold, NT, KS + 1, wread, xop, lda, 2*KS, OPT.get("pre1", 6), R, land_T, cons_T, (True, True), ev, sv, 7*NT + 1, ACC, WF)
    return dict(WF=WF, ACC=ACC, RSD=RSD)

QR2, QR3 = 81920, 112640
def pack_ops(a_, b_, m, rs, o):
    sel = "op_sel_hi:[1,0]" if m == 0 else "op_sel:[0,1] op_sel_hi:[1,1]"
    regs = [a_ + 4*m, a_ + 4*m + 2, b_ + 4*m, b_ + 4*m + 2]
    return [f"v_pk_mul_f32 v[{r}:{r+1}], v[{r}:{r+1}], v[{rs}:{rs+1}] {sel}" for r in regs] + \
           [f"v_cvt_pk_bf16_f32 v{o+i}, v{r}, v{r+1}" for i, r in enumerate(regs)]

def qkv3(k, cold):
    e = k.e
    XA, WF, ACC, AR, RSD = 12, 20, 50, 82, 242
    ST = AR + 8*19
    LA, RW, WG = 6, 7, 2
    e("s_lshl_b32 s24, s16, 2")
    e("s_add_u32 s24, s24, s18")
    e("s_mul_i32 s25, s24, 40960")
    e("s_lshl_b32 s26, s24, 11")
    e(f"s_add_u32 s26, s26, {L_STA}")
    e("s_lshl_b32 s27, s24, 8")
    e(f"s_add_u32 s27, s27, {FL + F_X}")
    soff_table(k, "s25", 10)
    e("s_mov_b32 s34, 0xffff0000")
    e("s_mov_b32 s35, 0")
    e("s_mov_b32 s36, 0xffff")
    e("s_mov_b32 s37, 0")
    e("s_mov_b32 s38, -1")
    e("s_mov_b32 s39, 0")
    e("v_add_u32 v4, 0xf000, v2")
    e(f"v_add_u32 v7, {QR3}, v2")
    e("v_and_b32 v6, 15, v1")
    e("v_subrev_u32 v5, 4, v6")
    e("v_cmp_gt_u32 vcc, 12, v6")
    e("v_lshrrev_b32 v8, 4, v1")
    e("v_mul_u32_u24 v9, 192, v8")
    e("v_cndmask_b32 v5, v5, v6, vcc")
    e("v_lshl_add_u32 v5, v5, 4, v9")
    e(f"v_add_u32 v5, {QR2}, v5")
    e("v_lshlrev_b32 v6, 4, v6")
    e(f"v_add_u32 v6, {QAUG}, v6")
    e("v_lshlrev_b32 v8, 6, v8")
    e("v_xor_b32 v8, v8, v0")
    e("s_add_u32 s31, s18, 8")
    e(f"s_mul_i32 s32, s31, {TSK}")
    e(f"s_add_u32 s32, s32, {KB}")
    e(f"s_mul_i32 s33, s31, {TSV}")
    e("v_add_u32 v9, s32, v8")
    e("s_sub_u32 s31, s33, 2560")
    e("v_add_u32 v48, s31, v8")
    e("v_cndmask_b32 v49, v48, v9, s[36:37]")
    e("s_lshl_b32 s52, s24, 4")
    e("s_add_u32 s52, s52, s17")
    e("s_lshl_b32 s30, s52, 7")
    e(f"s_add_u32 s30, s30, {FL + F_KV}")
    e("s_mul_i32 s52, s52, 5120")
    e("s_add_u32 s52, s52, s21")
    e(f"s_add_u32 s52, s52, {L_KV}")
    e("s_add_u32 s53, s52, 4096")
    e("s_getpc_b64 s[56:57]")
    k.label("L_pc2")
    e("s_add_u32 s56, s56, L_att_tab-L_pc2")
    e("s_addc_u32 s57, s57, 0")
    e("s_mov_b32 s58, 5120")
    e("s_mov_b32 s59, 0x00020000")
    e("s_mov_b32 s60, 4096")
    e(f"s_mul_i32 s61, s18, {TSK}")
    e(f"s_mul_i32 s62, s18, {TSV}")
    e("s_lshl_b32 s31, s24, 8")
    e("s_lshl_b32 s29, s17, 2")
    e("s_add_u32 s31, s31, s29")
    e(f"s_add_u32 s31, s31, {FL + F_O}")
    e("s_mul_i32 s29, s17, 2560")
    e("s_add_u32 s25, s25, s29")
    e(f"s_add_u32 s25, s25, {L_O}")
    e("s_lshl_b32 s28, s24, 11")
    e(f"s_add_u32 s28, s28, {FL + F_X0}")
    e("s_cmp_eq_u32 s23, 0")
    e("s_cselect_b32 s27, s28, s27")
    e("s_cselect_b32 s28, 7, 2")
    e("s_cbranch_scc1 L_q_nopub")
    pend_pub(k, cold)
    stamp(k, 0)
    k.label("L_q_nopub")
    poll(k, "s27", 16, 10, "s86", "s28")
    stamp(k, 1)
    e("s_cmp_lt_u32 s101, 864")
    e("s_cbranch_scc1 L_js")
    k.label("L_js_b")
    cold.label("L_js")
    cold.e("v_mov_b32 v10, 0")
    cold.e("v_mov_b32 v11, s85")
    cold.e("s_mov_b64 exec, 1")
    cold.e("buffer_store_dword v11, v10, s[4:7], s100 offen sc1")
    cold.e("s_mov_b64 exec, -1")
    cold.e("s_mov_b32 s101, 9999")
    cold.e("s_branch L_js_b")
    AOFF = {0: 0, 1: 8, 2: 16, 3: 24, 4: 8, 5: 24, 6: 0, 7: 16}
    ops = [(s, T) for s in range(21) for T in range(4)] + [(s, T) for s in range(21) for T in (4, 5)] + [(s, T) for s in range(21) for T in (6, 7)]
    N1_, N2_, nops = 84, 126, 168
    def wreg(n): return WF + 4 * (n % RW)
    def waddr(n):
        s, T = ops[n]
        if s == 20: return ("v6", 256*T, QR2 if T < 4 else None)
        if T < 4:
            a = s*4096 + T*1024
            return ("v2", a, a + 1024) if a < 0xf000 else ("v4", a - 0xf000, a + 1024)
        if T < 6: return ("v5", s*1536 + (T-4)*768, QR2 + s*1536 + (T-3)*768)
        return ("v7", s*2048 + (T-6)*1024, QR3 + s*2048 + (T-5)*1024)
    def wread(n):
        v, off, _ = waddr(n)
        k.ds(f"ds_read_b128 v[{wreg(n)}:{wreg(n)+3}], {v} offset:{off}", ("w", n))
    def chunk(n):
        end = waddr(n)[2]
        return None if end is None else (end - 1) // 15360
    def lda(i):
        s, m = divmod(i, 2)
        a = AR + 8*s + 4*m
        k.vmem(f"buffer_load_dwordx4 v[{a}:{a+3}], v0, s[4:7], s{40+s//2} offen offset:{2048*(s%2) + 256*m} sc1", ("a", i))
    ev = {}
    def at(n, f): ev.setdefault(n, []).append(f)
    def I(ins): return lambda: e(ins)
    def gate(n_read, n_cmp, n_br, reg, word, T, tag):
        def br():
            lf = k.newlabel("L_g"); lb = lf + "_b"
            e(f"s_cbranch_vccnz {lf}")
            k.label(lb)
            cold.label(lf); spin(cold, word - CTL, T); cold.e(f"s_branch {lb}")
        at(n_read, lambda: k.ds(cread(reg, word - CTL), tag))
        at(n_cmp, lambda: (k.ensure(tag), e(f"v_cmp_gt_u32 vcc, {T}, v{reg}")))
        at(n_br, br)
    seen = 0
    for t in range(nops):
        c_ = chunk(t)
        if c_ is not None and c_ > seen:
            seen = c_
            dl = t - LA - 1
            gate(dl - 6, dl, dl, VT + 2, C_LAND, LQ + c_, ("ctl", c_))
    def postat(n, T):
        at(n - 1, I(f"v_mov_b32 v{VT+1}, {T}"))
        at(n, lambda: k.ds(f"ds_write_b8 v{VB_}, v{VT+1} offset:{64 + C_CONS - CTL}"))
    if OPT.get("touch"):
        for j, n in enumerate((6, 22, 38, 54, 66)): postat(n, CQ + j)
    postat(80 - LA, CQ + 5)
    postat(nops - LA, CQ + 10)
    pre = OPT.get("preq", 7)
    for i in range(2*pre, 38):
        at((i//2 - pre) * 4 + 2*(i % 2), lambda i=i: lda(i))
    at(60, lambda: lda(38)); at(62, lambda: lda(39))
    sv = stats_ops(ST, XA, RSD, CC)
    at(16, lambda: k.wait(vm="st"))
    for j, op in enumerate(sv): at(17 + j, I(op))
    assert 17 + len(sv) <= 59
    def epi1():
        e("s_nop 3")
        for P in range(2):
            for m in range(2):
                o = ACC + 16*P + 4*m
                for op in pack_ops(ACC + 16*P, ACC + 16*P + 8, m, RSD, o): e(op)
                e(f"buffer_store_dwordx4 v[{o}:{o+3}], v8, s[4:7], s52 offen offset:{2048*P + 256*m} sc1")
        stamp(k, 2)
    at(N1_ - 1, epi1)
    def flag(val):
        e("v_mov_b32 v10, 0")
        e(f"v_mov_b32 v11, {val}")
        e("s_waitcnt vmcnt(0)")
        e("s_mov_b64 exec, 1")
        e("buffer_store_dword v11, v10, s[4:7], s30 offen sc1")
        e("s_mov_b64 exec, -1")
    at(N1_ + OPT.get("fk", 34), lambda: flag("s86"))
    gate(N2_ - 18, N2_ - 11, N2_ - 11, VT + 3, C_CONS, CQ + 5, "xc")
    for j in range(4):
        P, m = divmod(j, 2)
        o = ACC + 16*P + 4*m
        at(N2_ - 9 + j, lambda P=P, m=m, o=o: k.ds(f"ds_write_b128 v{(9, 49)[P]}, v[{o}:{o+3}] offset:{2048*P + 256*m}"))
    n = N2_ + 1
    for q in range(5):
        so, off = ("0", 1024*q) if q < 4 else ("s60", 0)
        at(max(n, N2_ + 1 + 2*(q//2)), lambda q=q, so=so, off=off: e(f"buffer_load_dwordx4 v[{TB+4*q}:{TB+4*q+3}], v2, s[56:59], {so} offen offset:{off}")); n += 1
    for m in range(2):
        o = ACC + 8 + 4*m
        po = pack_ops(ACC + 8, ACC + 24, m, RSD + 4, o)
        for j in range(0, 8, 2):
            at(n, I(po[j])); at(n, I(po[j+1])); n += 1
        def st(m=m, o=o):
            e("s_mov_b32 exec_hi, 0")
            e(f"buffer_store_dwordx4 v[{o}:{o+3}], v8, s[4:7], s53 offen offset:{256*m} sc1")
            k.ds(f"ds_write_b128 v48, v[{o}:{o+3}] offset:{4096 + 256*m}")
            e("s_mov_b32 exec_hi, -1")
        at(n, st); n += 1
    X0 = TB + 24
    for ins in [f"v_mov_b32 v{X0}, s32", f"v_mov_b32 v{X0+1}, s33"] + [f"v_mov_b32 v{X0+4+q}, 0" for q in range(4)] + \
               [f"v_mov_b32 v{X0+2}, 0x3f803f80", f"v_mov_b32 v{X0+3}, 0x3f803f80"]:
        at(n, I(ins)); n += 1
    def aux():
        e("s_mov_b64 exec, 1")
        k.ds(f"ds_write_b128 v{X0}, v[{X0+4}:{X0+7}] offset:2560")
        k.ds(f"ds_write_b64 v{X0+1}, v[{X0+2}:{X0+3}] offset:2560")
        k.ds(f"ds_write_b64 v{X0+1}, v[{X0+2}:{X0+3}] offset:2816")
        e("s_mov_b64 exec, -1")
    at(n, aux); n += 1
    at(n, I(f"v_mov_b32 v{X0}, 1")); n += 1
    at(n, lambda: k.ds(f"ds_write_b8 v{VB_}, v{X0} offset:{64 + C_LOC - CTL}")); n += 1
    for ins in ["s_mov_b32 s26, s25", "s_mov_b32 s34, 0x07060302", "s_mov_b32 s35, s61", "s_mov_b32 s36, s62"]:
        at(n, I(ins)); n += 1
    at(n, I("s_add_u32 s28, s56, 5120")); at(n, I("s_addc_u32 s29, s57, 0")); n += 1
    at(n, I("s_load_dwordx16 s[40:55], s[28:29], 0")); n += 1
    at(n, I("s_load_dwordx16 s[56:71], s[28:29], 64")); n += 1
    assert n < nops - 2, n
    k.reset_ds()
    k.ds(cread(VT + 2, C_LAND - CTL), ("ctl", 0))
    for i in range(4): lda(i)
    for m in range(2):
        k.vmem(f"buffer_load_dwordx4 v[{ST+4*m}:{ST+4*m+3}], v2, s[4:7], s26 offen offset:{1024*m} sc1", "st")
    for i in range(4, 2*pre): lda(i)
    k.ensure(("ctl", 0))
    chk(k, VT + 2, LQ, "L_q_c0")
    k.label("L_q_c0_b")
    cold.label("L_q_c0"); spin(cold, C_LAND - CTL, LQ); cold.e("s_branch L_q_c0_b")
    for n in range(LA): wread(n)
    for n in range(nops):
        s, T = ops[n]
        w = []
        if T == 0 and s < 20: w.append(f"vmcnt({k.n_vm(('a', 2*s + 1))})")
        if n % WG == 0:
            tag = ("w", min(n + WG - 1, nops - 1))
            last = max(i for i, t in enumerate(k.dq) if t == tag)
            if last >= k.dcov:
                cnt = len(k.dq) - 1 - last
                assert cnt <= 15
                w.append(f"lgkmcnt({cnt})"); k.dcov = last + 1
        if w: e("s_waitcnt " + " ".join(w))
        for m in range(2):
            acc = ACC + AOFF[T] + 4*m
            x = AR + 8*s + 4*m if s < 20 else XA + 4*m
            csrc = "0" if s == 0 else f"v[{acc}:{acc+3}]"
            e(f"{MF16} v[{acc}:{acc+3}], v[{wreg(n)}:{wreg(n)+3}], v[{x}:{x+3}], {csrc}")
            if m == 0 and n + LA < nops: wread(n + LA)
        for f in ev.get(n, []): f()
    e(cread(VT + 2, C_LOC - CTL))
    e(cread(VT + 3, C_HK - CTL))
    for q in range(4): e(f"v_permlane16_swap_b32 v{ACC+8+q}, v{ACC+12+q}")
    e("s_nop 1")
    for m in range(2):
        for op in pack_ops(ACC, ACC + 16, m, RSD + 2, AQ1[m]): e(op)
    if OPT.get("vlate"): e("s_waitcnt vmcnt(2)")
    else: publish(k, "s30", 18, " sc1", "s87")
    for r in (0, 1, 2): e(f"v_add_u32 v{TB+r}, s35, v{TB+r}")
    for r in (6, 7, 8, 9): e(f"v_add_u32 v{TB+r}, s36, v{TB+r}")
    for q in range(4): e(f"v_permlane16_swap_b32 v{AQ1[0]+q}, v{AQ1[1]+q}")
    k.reset_vm()
    stamp(k, 3)
    return ACC + 8

AQ1 = [10, 14]
def scale_pack(k, ACC, P, m, rs, o, relu2=False):
    sel = "op_sel_hi:[1,0]" if m == 0 else "op_sel:[0,1] op_sel_hi:[1,1]"
    regs = [ACC + 16*P + 4*m, ACC + 16*P + 4*m + 2, ACC + 16*P + 8 + 4*m, ACC + 16*P + 8 + 4*m + 2]
    if relu2:
        for r in regs:
            k.e(f"v_max_f32 v{r}, 0, v{r}")
            k.e(f"v_max_f32 v{r+1}, 0, v{r+1}")
    for r in regs: k.e(f"v_pk_mul_f32 v[{r}:{r+1}], v[{r}:{r+1}], v[{rs}:{rs+1}] {sel}")
    if relu2:
        for r in regs: k.e(f"v_pk_mul_f32 v[{r}:{r+1}], v[{r}:{r+1}], v[{r}:{r+1}]")
    for i, r in enumerate(regs): k.e(f"v_cvt_pk_bf16_f32 v{o+i}, v{r}, v{r+1}")

def gemm2(k, cold, pfx, KS, lds_of, xch, a_off, a_rbs, flag_off, bias, pubval, final_branch, land_T, cons_T, cons_x):
    e = k.e
    XR = 16; BR = 28; WF = 48; ACC = 92; AR = 132; R = 14
    NT = 5
    e("s_and_b32 s28, s18, 1")
    e("s_lshr_b32 s29, s18, 1")
    e("s_lshl_b32 s24, s19, 1")
    e("s_add_u32 s24, s24, s28")
    e("s_mul_i32 s32, s24, 40960")
    e("s_mul_i32 s30, s20, 5120")
    e("s_add_u32 s32, s32, s30")
    e("s_add_u32 s33, s32, 4096")
    e("s_lshl_b32 s30, s29, 8")
    e("v_add_u32 v7, s30, v0")
    e("s_xor_b32 s31, s30, 256")
    e("v_add_u32 v8, s31, v0")
    e("v_lshrrev_b32 v12, 4, v1")
    e("v_and_b32 v13, 15, v1")
    e("v_lshrrev_b32 v9, 5, v1")
    e("v_lshlrev_b32 v9, 9, v9")
    e("v_lshl_add_u32 v9, v13, 4, v9")
    e("v_and_b32 v14, 1, v12")
    e("v_lshl_add_u32 v9, v14, 3, v9")
    e("v_add_u32 v9, s30, v9")
    e(f"buffer_load_dwordx4 v[{XR}:{XR+3}], v7, s[4:7], s32 offen sc1")
    e(f"buffer_load_dwordx4 v[{XR+4}:{XR+7}], v7, s[4:7], s32 offen offset:2048 sc1")
    e(f"buffer_load_dwordx2 v[{XR+8}:{XR+9}], v9, s[4:7], s33 offen sc1")
    e("v_lshlrev_b32 v40, 4, v12")
    e("v_lshlrev_b32 v41, 3, v12")
    e("s_mul_i32 s34, s20, 160")
    if bias:
        e(f"buffer_load_dwordx4 v[{BR}:{BR+3}], v40, s[12:15], s34 offen")
        e(f"buffer_load_dwordx4 v[{BR+4}:{BR+7}], v40, s[12:15], s34 offen offset:64")
        e(f"buffer_load_dwordx2 v[{BR+8}:{BR+9}], v41, s[12:15], s34 offen offset:128")
    e(f"s_mul_i32 s25, s24, {a_rbs}")
    e(f"s_mul_i32 s30, s29, {KS*2048}")
    e("s_add_u32 s25, s25, s30")
    e(f"s_add_u32 s25, s25, {a_off}")
    soff_table(k, "s25", KS // 2)
    e("s_lshl_b32 s27, s24, 8")
    e("s_lshl_b32 s30, s29, 5")
    e("s_add_u32 s27, s27, s30")
    e(f"s_add_u32 s27, s27, {FL + flag_off}")
    e("s_mul_i32 s30, s29, 5120")
    e("v_add_u32 v4, s30, v2")
    e("v_add_u32 v5, 0xf000, v4")
    e("v_add_u32 v6, 0x1e000, v4")
    e("s_lshl_b32 s38, s24, 11")
    e("s_lshr_b32 s36, s20, 1")
    e("s_lshl_b32 s36, s36, 9")
    e("s_add_u32 s38, s38, s36")
    e("s_and_b32 s36, s20, 1")
    e("s_lshl_b32 s36, s36, 3")
    e("s_add_u32 s38, s38, s36")
    e("s_lshl_b32 s36, s29, 8")
    e("s_add_u32 s38, s38, s36")
    e(f"s_add_u32 s38, s38, {L_STA}")
    e("s_lshl_b32 s36, s20, 1")
    e("s_add_u32 s36, s36, s29")
    e("s_lshl_b32 s36, s36, 2")
    e("s_lshl_b32 s37, s24, 8")
    e("s_add_u32 s36, s36, s37")
    e(f"s_add_u32 s36, s36, {FL + F_X}")
    e("s_mul_i32 s30, s18, 5120")
    e(f"s_add_u32 s30, s30, {xch}")
    e("v_add_u32 v14, s30, v2")
    e("s_xor_b32 s30, s18, 2")
    e("s_mul_i32 s30, s30, 5120")
    e(f"s_add_u32 s30, s30, {xch}")
    e("v_add_u32 v15, s30, v2")
    pend_pub(k, cold, 6 if bias else 3)
    stamp(k, {"o": 5, "2": 11}[pfx])
    e("s_waitcnt vmcnt(1)")
    for d in range(10):
        dst = ACC + 8*(d // 2) + 2*(d % 2)
        e(f"v_lshlrev_b32 v{dst}, 16, v{XR+d}")
        e(f"v_and_b32 v{dst+1}, 0xffff0000, v{XR+d}")
        if bias:
            e(f"v_lshlrev_b32 v10, 16, v{BR+d}")
            e(f"v_and_b32 v11, 0xffff0000, v{BR+d}")
            e(f"v_pk_add_f32 v[{dst}:{dst+1}], v[{dst}:{dst+1}], v[10:11]")
    poll(k, "s27", 8, 10, "s85")
    stamp(k, {"o": 6, "2": 12}[pfx])
    def areg(s, m): return AR + 8 * (s % R) + 4 * m
    def lda(i):
        s, m = divmod(i, 2)
        a = areg(s, m)
        k.vmem(f"buffer_load_dwordx4 v[{a}:{a+3}], v{7+m}, s[4:7], s{40+s//2} offen offset:{2048*(s%2)} sc1", ("a", i))
    def wread(s, T, dst, tag):
        b, off = divmod(lds_of(2*s), 0xf000)
        if off + 4096 > 65535: b += 1; off -= 0xf000
        assert off + 1024*T >= 0 or True
        if off < 0:
            b -= 1; off += 0xf000
        assert off + 1024*T <= 65535, (s, T, off)
        k.ds(f"ds_read_b128 v[{dst}:{dst+3}], v{4+b} offset:{off + 1024*T}", tag)
    word = C_CONS if pfx == "2" else C_RD
    def xcheck():
        Tt = C2 + max(SLOTS.index(sl) for sl in X2S) // 2 if pfx == "2" else 2
        lf = k.newlabel("L_xc"); lb = lf + "_b"
        k.ensure("xc")
        chk(k, VT + 3, Tt, lf)
        k.label(lb)
        cold.label(lf)
        spin(cold, word - CTL, Tt)
        cold.e(f"s_branch {lb}")
    ev = {(KS-2)*NT + 1: [lambda: k.ds(cread(VT + 3, word - CTL), "xc")], (KS-1)*NT + 1: [xcheck]}
    mainloop(k, cold, NT, KS, wread, lambda s, m: f"v[{areg(s, m)}:{areg(s, m)+3}]", lda, 2*KS, OPT.get("pre2", 6), R, land_T, cons_T,
             (False, True), ev, [], 0, ACC, WF)
    stamp(k, {"o": 7, "2": 13}[pfx])
    e(f"v_mov_b32 v{VT+1}, {cons_x}")
    e("s_xor_b32 s30, s18, 2")
    e("s_lshl_b32 s30, 1, s30")
    e("s_nop 0")
    for T in range(5):
        if T == 3: e("s_nop 1")
        e(f"ds_write_b128 v14, v[{ACC+8*T+4}:{ACC+8*T+7}] offset:{1024*T}")
    e(f"ds_write_b8 v{VB_}, v{VT+1} offset:{64+C_XF-CTL}")
    e("v_mov_b32 v10, 0x3f803f80")
    e("v_mov_b32 v42, 0")
    e("v_mov_b32 v43, 0")
    L = k.newlabel("L_xw")
    e("s_mov_b32 s90, 0")
    k.label(L)
    e(cread(VT, C_XF - CTL))
    e("s_add_u32 s90, s90, 1")
    e(f"s_cmp_gt_u32 s90, {SPIN_MAX*8}")
    e(f"s_cbranch_scc1 {L}_out")
    e("s_waitcnt lgkmcnt(0)")
    e(f"v_cmp_gt_u32 vcc, {cons_x}, v{VT}")
    e("s_and_b32 s37, vcc_lo, s30")
    e(f"s_cbranch_scc1 {L}")
    k.label(L + "_out")
    RX = AR
    for T in range(5):
        e(f"ds_read_b128 v[{RX+4*T}:{RX+4*T+3}], v15 offset:{1024*T}")
    e(f"ds_write_b8 v{VB_}, v{VT+1} offset:{64+C_CONS-CTL}")
    for T in range(5):
        e(f"s_waitcnt lgkmcnt({5-T})")
        for j in (0, 2):
            e(f"v_pk_add_f32 v[{RX+4*T+j}:{RX+4*T+j+1}], v[{RX+4*T+j}:{RX+4*T+j+1}], v[{ACC+8*T+j}:{ACC+8*T+j+1}]")
        for j in (0, 2):
            e(f"v_cvt_pk_bf16_f32 v{WF+2*T+j//2}, v{RX+4*T+j}, v{RX+4*T+j+1}")
    if final_branch:
        lf = k.newlabel("L_final")
        e("s_cmp_eq_u32 s23, 1")
        e(f"s_cbranch_scc1 {lf}")
        c = cold
        c.label(lf)
        c.e("v_mul_u32_u24 v13, 1280, v13")
        c.e("v_add_u32 v40, v40, v13")
        c.e("v_add_u32 v41, v41, v13")
        c.e("s_mul_i32 s30, s24, 40960")
        c.e("s_add_u32 s34, s34, s30")
        c.e("s_mul_i32 s30, s29, 20480")
        c.e("s_add_u32 s34, s34, s30")
        c.e(f"buffer_store_dwordx4 v[{WF}:{WF+3}], v40, s[8:11], s34 offen")
        c.e(f"buffer_store_dwordx4 v[{WF+4}:{WF+7}], v40, s[8:11], s34 offen offset:64")
        c.e(f"buffer_store_dwordx2 v[{WF+8}:{WF+9}], v41, s[8:11], s34 offen offset:128")
        c.e("s_branch L_mega_fin")
    def fin(kk, sc):
        kk.e(f"buffer_store_dwordx4 v[{WF}:{WF+3}], v7, s[4:7], s32 offen{sc}")
        kk.e(f"buffer_store_dwordx4 v[{WF+4}:{WF+7}], v7, s[4:7], s32 offen offset:2048{sc}")
        kk.e(f"buffer_store_dwordx2 v[{WF+8}:{WF+9}], v9, s[4:7], s33 offen{sc}")
        for r in range(10):
            kk.e(f"v_dot2_f32_bf16 v42, v{WF+r}, v10, v42")
            kk.e(f"v_dot2_f32_bf16 v43, v{WF+r}, v{WF+r}, v43")
        kk.e("s_nop 2")
        for sw in ("v_permlane32_swap_b32", "v_permlane16_swap_b32"):
            kk.e("v_mov_b32 v10, v42")
            kk.e("v_mov_b32 v11, v43")
            kk.e("s_nop 1")
            kk.e(f"{sw} v42, v10")
            kk.e(f"{sw} v43, v11")
            kk.e("s_nop 0")
            kk.e("v_add_f32 v42, v42, v10")
            kk.e("v_add_f32 v43, v43, v11")
        kk.e("s_mov_b64 exec, 0xffff")
        kk.e(f"buffer_store_dwordx2 v[42:43], v2, s[4:7], s38 offen{sc}")
        kk.e("s_mov_b64 exec, -1")
    dual(k, cold, fin)
    e("s_mov_b32 s80, s36")
    e(f"s_mov_b32 s81, {pubval}")

def att_table():
    q = [[0]*4 for _ in range(5*64)]
    masks = [0]*16
    for l in range(64):
        hf, r = l >> 5, l & 31
        pi = (r & 0x13) | (((r >> 2) & 1) << 3) | (((r >> 3) & 1) << 2)
        vk = [(3*ee + hf)*512 + ((pi ^ (((3*ee + hf) & 3) << 2)) * 16) for ee in range(2)]
        vk2 = 1024 + (pi ^ 8) * 16 if hf else 2560
        ch, rr, c = (l >> 4) & 1, (l >> 2) & 3, l & 3
        vv = []
        for ee in range(2):
            for rho in range(2):
                if ch == 0: o, half = 3*ee + (c & 1), c >> 1
                elif c == 0: o, half = 2, ee
                else: o = None
                vv.append(2560 if o is None else o*512 + half*8 + (((8*hf + 4*rho + rr) ^ (((5 + o) & 3) << 2)) * 16))
        dq = r - 8*hf
        mk = []
        for j in range(8):
            c0 = [16*(x // 8) + x % 8 for x in (2*j, 2*j + 1)]
            mk.append((0xffff if c0[0] <= dq else 0) | (0xffff0000 if c0[1] <= dq else 0))
        for rho in range(16):
            if 16*(rho // 8) + rho % 8 <= dq: masks[rho] |= 1 << l
        q[l] = [KB + vk[0], KB + vk[1], KB + vk2, 0]
        q[64 + l] = [0x3f803f80, 0x3f803f80, vv[0], vv[1]]
        q[128 + l] = [vv[2], vv[3], 0, 0]
        q[192 + l] = mk[:4]
        q[256 + l] = mk[4:]
    out = ".p2align 6\nL_att_tab:\n"
    for x in q: out += ".long " + ", ".join(f"{v:#x}" for v in x) + "\n"
    for m in masks: out += f".long {m & 0xffffffff:#x}, {m >> 32:#x}\n"
    return out

TB = 82
AQS = 4
def attention(a, cold, qsh):
    e = a.e
    VK = [TB, TB + 1]; VK2 = TB + 2; VV = [[TB + 6, TB + 7], [TB + 8, TB + 9]]
    MK = [TB + 12 + j for j in range(8)]
    Q2 = [AQS, AQS + 2]; MF = AQS; ONE = TB + 4; MXL = [246, 247, TB + 10, TB + 11]; TMP = 254
    KR, VR = 18, 34
    def slot(n): return 102 + 16 * n if n < 9 else 50 + 16 * (n - 9)
    SL = [{kt: kt for kt in range(9)}, {8: 9, 0: 10, 1: 10, 2: 1, 3: 2, 4: 3, 5: 4, 6: 5, 7: 6}]
    OA = [slot(0), slot(7)]
    e(f"v_mov_b32 v{TMP}, 0x3f80")
    e(f"v_cndmask_b32 v{AQS}, v{qsh}, v{TMP}, s[38:39]")
    e(f"v_cndmask_b32 v{AQS+1}, v{qsh+1}, 0, s[38:39]")
    e(f"v_mov_b32 v{AQS+2}, 0")
    e(f"v_mov_b32 v{AQS+3}, 0")
    e(f"v_cndmask_b32 v{AQS+4}, v{qsh+2}, v{TMP}, s[38:39]")
    e(f"v_cndmask_b32 v{AQS+5}, v{qsh+3}, 0, s[38:39]")
    e("s_waitcnt lgkmcnt(0)")
    for reg, word in ((VT + 2, C_LOC), (VT + 3, C_HK)):
        lf = a.newlabel("L_ag"); lb = lf + "_b"
        chk(a, reg, 1, lf)
        a.label(lb)
        cold.label(lf); spin(cold, word - CTL, 1); cold.e(f"s_branch {lb}")
    stamp(a, 4)
    def ic(): return sum(1 for l in a.lines if l.startswith("    ") and not l.strip().startswith(";"))
    mark = {}
    dsq = []
    def after_mfma():
        for _ in range(2):
            if dsq:
                x = dsq.pop(0)
                if callable(x): x()
                else: a.ds(*x)
    def kreads(u, kt, buf):
        return [(f"ds_read_b128 v[{buf}:{buf+3}], v{VK[u]} offset:{kt*TSK}", ("k", u, kt)),
                (f"ds_read_b128 v[{buf+4}:{buf+7}], v{VK2} offset:{kt*TSK}", ("k", u, kt))]
    def vreads(u, kt, buf):
        return [(f"ds_read_b64_tr_b16 v[{buf+4*G+2*r}:{buf+4*G+2*r+1}], v{VV[u][r]} offset:{kt*TSV + G*256}", ("v", u, kt))
                for G in range(2) for r in range(2)]
    def smfma(u, kt, buf, half, wall=False):
        d = slot(SL[u][kt])
        a.ensure(("k", u, kt), wall)
        if half == 0:
            e(f"v_mfma_f32_32x32x16_bf16 v[{d}:{d+15}], v[{buf}:{buf+3}], v[{AQ1[u]}:{AQ1[u]+3}], 0")
        else:
            e(f"v_mfma_f32_32x32x16_bf16 v[{d}:{d+15}], v[{buf+4}:{buf+7}], v[{Q2[u]}:{Q2[u]+3}], v[{d}:{d+15}]")
            mark[("s", u, kt)] = ic()
    started = {}
    def maxops(u, kt, keys):
        base = slot(SL[u][kt]); ops = []
        for r in range(0, 16, 2):
            ci = (r // 2) % 4
            if (u, ci) not in started:
                started[(u, ci)] = 1
                ops.append((keys, f"v_max_f32_e64 v{MXL[ci]}, v{base+r}, v{base+r+1}"))
            else:
                ops.append((keys, f"v_max3_f32 v{MXL[ci]}, v{MXL[ci]}, v{base+r}, v{base+r+1}"))
        return ops
    def mergeops(u):
        s8, s0 = slot(SL[u][8]), slot(SL[u][0])
        keys = [("s", u, 8), ("s", u, 0)]
        return [(keys, f"v_cndmask_b32 v{s8+r}, v{s0+r}, v{s8+r}, s[{40+2*r}:{41+2*r}]") for r in range(16)]
    def ready(keys): return all(kk in mark and ic() >= mark[kk] + 12 for kk in keys)
    def drain_v(vq, n, force=False):
        while vq and n > 0:
            if not ready(vq[0][0]):
                if not force: return
                for kk in vq[0][0]: need(kk)
            e(vq.pop(0)[1]); n -= 1
    def finalops():
        t0, t1 = TMP, TMP + 1
        return [f"v_max_f32 v{MXL[0]}, v{MXL[0]}, v{MXL[1]}",
                f"v_max3_f32 v{MXL[0]}, v{MXL[0]}, v{MXL[2]}, v{MXL[3]}",
                f"v_mov_b32 v{MXL[1]}, v{MXL[0]}",
                "s_nop 1",
                f"v_permlane32_swap_b32 v{MXL[0]}, v{MXL[1]}",
                "s_nop 0",
                f"v_max_f32 v{MXL[0]}, v{MXL[0]}, v{MXL[1]}",
                f"v_cndmask_b32 v{t0}, 0, -v{MXL[0]}, s[38:39]",
                f"v_and_b32 v{t1}, 0xffff0000, v{t0}",
                f"v_sub_f32 v{t0}, v{t0}, v{t1}",
                f"v_and_b32 v{MXL[0]}, 0xffff0000, v{t0}",
                f"v_sub_f32 v{t0}, v{t0}, v{MXL[0]}",
                f"v_perm_b32 v{MF}, v{MXL[0]}, v{t1}, s34",
                f"v_lshrrev_b32 v{MF+1}, 16, v{t0}"]
    def submfma(u, kt):
        d = slot(SL[u][kt])
        e(f"v_mfma_f32_32x32x16_bf16 v[{d}:{d+15}], v[{ONE}:{ONE+3}], v[{MF}:{MF+3}], v[{d}:{d+15}]")
        mark[("m", u, kt)] = ic()
    def need(key, dist=12):
        n = mark[key] + dist - ic()
        if n > 0:
            e(f"s_nop {n-1}")
            mark[key] = -99
    pvfirst = {0: True, 1: True}
    def pv(u, vb, pb, tag, wall=False):
        a.ensure(tag, wall)
        o = OA[u]
        csrc = "0" if pvfirst[u] else f"v[{o}:{o+15}]"
        pvfirst[u] = False
        e(f"v_mfma_f32_32x32x16_bf16 v[{o}:{o+15}], v[{vb}:{vb+3}], v[{pb}:{pb+3}], {csrc}")
        mark[("o", u)] = ic()
    def prof(ix):
        if PROF:
            a.e("s_memtime s[92:93]"); a.e("s_waitcnt lgkmcnt(0)"); a.e("s_lshr_b32 s94, s95, 4"); a.e(f"s_add_u32 s94, s94, {ix}"); a.e("s_mov_b32 m0, s94"); a.e("s_nop 0"); a.e("v_writelane_b32 v3, s92, m0")
    a.reset_ds()
    order = [7, 8, 0, 6, 5, 4, 3, 2, 1]
    kb4 = [KR, KR + 8, VR, VR + 8]
    for n in range(3):
        for x in kreads(0, order[n], kb4[n]): a.ds(*x)
    dsq += kreads(0, order[3], kb4[3])
    vq = []
    for n, kt in enumerate(order):
        smfma(0, kt, kb4[n % 4], 0)
        after_mfma()
        drain_v(vq, 5)
        smfma(0, kt, kb4[n % 4], 1)
        if n + 4 < 9: dsq += kreads(0, order[n + 4], kb4[n % 4])
        if n == 5: dsq += kreads(1, 0, KR + 8)
        if n == 6: dsq += [(cread(VT + 3, C_HV - CTL), "hv"), (cread(VT + 2, C_MODE - CTL), "hv")]
        if n == 8: dsq += kreads(1, 8, KR)
        after_mfma()
        drain_v(vq, 5)
        if kt == 0: vq += mergeops(0) + maxops(0, 8, [])
        elif kt != 8: vq += maxops(0, kt, [("s", 0, kt)])
    assert not dsq
    if OPT.get("vlate"): publish(a, "s30", TMP, " sc1", "s87")
    lf = a.newlabel("L_hv"); lb = lf + "_b"
    a.ensure("hv")
    e(f"v_readfirstlane_b32 s22, v{VT+2}")
    drain_v(vq, 99, True)
    for op in finalops(): e(op)
    chk(a, VT + 3, 1, lf)
    a.label(lb)
    cold.label(lf); spin(cold, C_HV - CTL, 1); cold.e(f"s_branch {lb}")
    dsq += vreads(0, 1, VR + 8)
    submfma(0, 1); after_mfma(); submfma(0, 2); after_mfma()
    prof(44)
    ev = {}
    def at(t, g, f): ev.setdefault((t, g), []).append(f)
    kbuf = {8: KR, 0: KR + 8}
    for n, kt in enumerate([1, 2, 3, 4, 5, 6, 7]): kbuf[kt] = KR + 8 * (n % 2)
    plan = {8: (1, 1, 3), 0: (1, 5, 7), 1: (2, 10, 13), 2: (3, 4, 9), 3: (4, 4, 9), 4: (5, 4, 9), 5: (6, 4, 9), 6: (7, 4, 9), 7: (7, 11, 13)}
    seq1 = [8, 0, 1, 2, 3, 4, 5, 6, 7]
    vq1 = []
    def drain_merge():
        while vq1 and "cndmask" in vq1[0][1]: drain_v(vq1, 1, True)
    for n, kt in enumerate(seq1):
        t, g0, g1 = plan[kt]
        if kt == 1: at(t, g0, drain_merge)
        at(t, g0, lambda kt=kt: (smfma(1, kt, kbuf[kt], 0), after_mfma()))
        def second(kt=kt, n=n):
            smfma(1, kt, kbuf[kt], 1)
            if n + 2 < 9:
                nk = seq1[n + 2]
                dsq[0:0] = kreads(1, nk, kbuf[nk])
            after_mfma()
            if n + 2 == 8: post(a, C_RD - CTL, 1)
            if kt == 0: vq1.extend(mergeops(1) + maxops(1, 8, []))
            elif kt != 8: vq1.extend(maxops(1, kt, [("s", 1, kt)]))
        at(t, g1, second)
    def expstream(u, extra_ev, vqx, rate):
        prev_tail = None
        for kt in range(1, 9):
            sr_ = slot(SL[u][kt])
            need(("m", u, kt))
            if kt > 1: dsq.extend(vreads(u, kt, VR + 8*(kt % 2)))
            seq = []
            for r in range(0, 16, 2):
                seq.append([f"v_exp_f32 v{sr_+r}, v{sr_+r}", f"v_exp_f32 v{sr_+r+1}, v{sr_+r+1}"])
                if r >= 2: seq.append([f"v_cvt_pk_bf16_f32 v{sr_+r//2-1}, v{sr_+r-2}, v{sr_+r-1}"])
            for i, grp in enumerate(seq):
                for ins in grp: e(ins)
                if i == 0 and prev_tail: e(prev_tail)
                if kt > 1 and i in (2, 7):
                    G = 0 if i == 2 else 1
                    pv(u, VR + 8*((kt-1) % 2) + 4*G, slot(SL[u][kt-1]) + 4*G, ("v", u, kt-1), False)
                    after_mfma()
                if i == 11 and kt + 2 <= 8:
                    submfma(u, kt + 2); after_mfma()
                for f in extra_ev.get((kt, i), []): f()
                if kt == 8 and i in (9, 11):
                    if i == 9: dsq.extend(vreads(u, 0, KR))
                    after_mfma()
                drain_v(vqx, rate)
            assert not dsq, (u, kt, dsq)
            prev_tail = f"v_cvt_pk_bf16_f32 v{sr_+7}, v{sr_+14}, v{sr_+15}"
        return prev_tail
    def tail(u, prev_tail):
        s8 = slot(SL[u][8]); P0 = s8 + 8
        e(prev_tail)
        for G in range(2):
            for j in range(4*G, 4*G + 4):
                e(f"v_and_b32 v{P0+j}, v{s8+j}, v{MK[j]}")
            for j in range(4*G, 4*G + 4):
                e(f"v_xor_b32 v{s8+j}, v{s8+j}, v{P0+j}")
            pv(u, VR + 4*G, P0 + 4*G, ("v", u, 0))
            e("s_nop 0")
            pv(u, KR + 4*G, s8 + 4*G, ("v", u, 0))
            after_mfma()
    def normops(u, od):
        o = OA[u]; keys = [("o", u)]
        ops = [(keys, f"v_rcp_f32 v254, v{o+12}"), ([], "s_nop 0"), ([], "v_mov_b32 v255, v254")]
        ops += [([], f"v_pk_mul_f32 v[{o+r}:{o+r+1}], v[{o+r}:{o+r+1}], v[254:255]") for r in range(0, 12, 2)]
        ops += [([], f"v_cvt_pk_bf16_f32 v{od+r//2}, v{o+r}, v{o+r+1}") for r in range(0, 8, 2)]
        return ops
    at(8, 3, lambda: a.ds(cread(VT + 3, C_HV - CTL), "hv2"))
    pt = expstream(0, ev, vq1, 2)
    drain_v(vq1, 99, True)
    for op in finalops(): e(op)
    lf = a.newlabel("L_hv"); lb = lf + "_b"
    a.ensure("hv2")
    chk(a, VT + 3, 2, lf)
    a.label(lb)
    cold.label(lf); spin(cold, C_HV - CTL, 2); cold.e(f"s_branch {lb}")
    submfma(1, 1); submfma(1, 2)
    dsq += vreads(1, 1, VR + 8)
    tail(0, pt)
    prof(42)
    o0 = OA[0]
    vq0 = normops(0, 10) + [([], f"v_cvt_pk_bf16_f32 v14, v{o0+8}, v{o0+9}"), ([], f"v_cvt_pk_bf16_f32 v15, v{o0+10}, v{o0+11}")]
    ev2 = {(3, 0): [lambda: dual(a, cold, lambda kk, sc: kk.e(f"buffer_store_dwordx4 v[10:13], v2, s[4:7], s26 offen{sc}"))],
           (8, 12): [lambda: post(a, C_RD - CTL, 2)]}
    pt = expstream(1, ev2, vq0, 1)
    assert not vq0
    e("s_nop 0")
    tail(1, pt)
    o1 = OA[1]; OD = slot(0)
    vqn = normops(1, OD) + [([], f"v_cvt_pk_bf16_f32 v16, v{o1+8}, v{o1+9}"), ([], f"v_cvt_pk_bf16_f32 v17, v{o1+10}, v{o1+11}")]
    need(("o", 1))
    for _, op in vqn: e(op)
    prof(40)
    def aep(kk, sc):
        kk.e(f"buffer_store_dwordx4 v[{OD}:{OD+3}], v2, s[4:7], s26 offen offset:1536{sc}")
        kk.e("s_mov_b32 exec_hi, 0")
        kk.e(f"buffer_store_dwordx4 v[14:17], v2, s[4:7], s26 offen offset:1024{sc}")
        kk.e("s_mov_b32 exec_hi, -1")
    dual(a, cold, aep)
    e("s_mov_b32 s80, s31")
    e("s_mov_b32 s81, s85")

STG = CTL - 32768
def job_lanes(k):
    e = k.e
    e("v_bfe_u32 v26, v1, 4, 1")
    e("v_and_b32 v27, 15, v1")
    e("v_lshlrev_b32 v7, 11, v26")
    e("v_lshl_add_u32 v7, v27, 4, v7")
    e("v_lshl_add_u32 v7, v5, 3, v7")
    e("v_lshlrev_b32 v47, 10, v5")
    e("v_lshl_add_u32 v47, v26, 8, v47")
    e("v_lshl_add_u32 v47, v27, 4, v47")
def colunit(k, vos, vdst, t0):
    e = k.e
    e(f"v_add_u32 {vdst}, 80, {vos}")
    e(f"v_add_u32 {t0}, 155, {vos}")
    e(f"v_cmp_lt_u32 vcc, 4, {vos}")
    e("s_nop 1")
    e(f"v_cndmask_b32 {vdst}, {vdst}, {t0}, vcc")
    e(f"v_subrev_u32 {t0}, 10, {vos}")
    e(f"v_lshlrev_b32 {t0}, 2, {t0}")
    e("s_mov_b32 s91, 0x413022")
    e(f"v_lshrrev_b32 {t0}, {t0}, s91")
    e(f"v_and_b32 {t0}, 15, {t0}")
    e(f"v_cmp_lt_u32 vcc, 9, {vos}")
    e("s_nop 1")
    e(f"v_cndmask_b32 {vdst}, {vdst}, {t0}, vcc")

def colsum(k, frags, soff):
    e = k.e
    for q in range(4): e(f"v_mov_b32 v{64+q}, 0")
    for r in range(4):
        for n in range(len(frags[0])):
            for cb, fl in enumerate(frags):
                e(f"v_dot2_f32_bf16 v{64+cb}, v{fl[n]+r}, v40, v{64+cb}")
    e("s_nop 2")
    for q in range(4): e(f"v_mov_b32 v{68+q}, v{64+q}")
    e("s_nop 1")
    for q in range(4): e(f"v_permlane16_swap_b32 v{64+q}, v{68+q}")
    e("s_nop 1")
    for q in range(4): e(f"v_add_f32 v{64+q}, v{64+q}, v{68+q}")
    e("s_mov_b32 s60, 0xffff")
    e("s_mov_b32 s61, 0xffff")
    e("v_cndmask_b32 v12, v65, v64, s[60:61]")
    e("v_cndmask_b32 v13, v67, v66, s[60:61]")
    e("v_and_b32 v14, 15, v1")
    e("v_lshl_add_u32 v14, v5, 4, v14")
    e("v_lshlrev_b32 v14, 2, v14")
    e("v_bfe_u32 v68, v1, 4, 1")
    e("v_mul_u32_u24 v68, 5120, v68")
    e("v_add_u32 v14, v14, v68")
    if soff:
        e(f"buffer_store_dword v12, v14, s[4:7], {soff} offen sc1")
        e(f"s_add_u32 {soff}, {soff}, 10240")
        e(f"buffer_store_dword v13, v14, s[4:7], {soff} offen sc1")

def epoch(k, v):
    e = k.e
    e(f"v_readfirstlane_b32 s96, {v}")
    e("s_mul_i32 s97, s96, 0x9e3779b1")
    e("s_add_u32 s97, s97, 0x7f4a7c15")
    e("s_add_u32 s85, s97, 1")
    e("s_add_u32 s86, s97, 1")
    e("s_add_u32 s87, s97, 2")
    e("s_add_u32 s98, s97, 3")

def gen_mega():
    c = St("cw"); h = St("hw"); cold = St("cold"); top = St("top")
    e = top.e
    if PROF:
        e("s_memrealtime s[88:89]")
    e("s_load_dwordx16 s[24:39], s[0:1], 0")
    e(f"s_load_dwordx2 s[60:61], s[0:1], {KA_OUT}")
    e(f"s_load_dwordx2 s[62:63], s[0:1], {KA_WS}")
    e("s_cmp_ge_u32 s2, 256")
    e("s_cbranch_scc1 L_mega_end")
    e("v_lshrrev_b32 v10, 6, v0")
    e("v_and_b32 v1, 63, v0")
    e("v_readfirstlane_b32 s18, v10")
    e("s_and_b32 s3, s2, 7")
    e("s_lshr_b32 s99, s2, 3")
    e("s_getpc_b64 s[40:41]")
    top.label("L_pc")
    e("s_sub_u32 s40, s40, L_pc-L_code_begin")
    e("s_subb_u32 s41, s41, 0")
    e("s_mov_b32 s42, L_code_end-L_code_begin")
    e("s_mov_b32 s43, 0x00020000")
    e("s_and_b32 s44, s99, 1")
    e("s_lshl_b32 s44, s44, 3")
    e("s_add_u32 s44, s44, s18")
    e("s_lshl_b32 s44, s44, 12")
    e("v_lshlrev_b32 v4, 6, v1")
    e("v_add_u32 v5, s44, v4")
    e("buffer_load_dword v254, v5, s[40:43], 0 offen")
    e("s_and_b32 s17, s99, 15")
    e("s_lshl_b32 s16, s3, 1")
    e("s_lshr_b32 s83, s99, 4")
    e("s_add_u32 s16, s16, s83")
    e("s_and_b32 s20, s99, 7")
    e("s_lshl_b32 s19, s3, 2")
    e("s_lshr_b32 s84, s99, 3")
    e("s_add_u32 s19, s19, s84")
    e("v_lshlrev_b32 v2, 4, v1")
    e("v_mov_b32 v3, 0")
    e("s_mov_b32 s21, 0")
    e("s_mov_b32 s22, 0")
    e("s_mov_b32 s23, 0")
    e("s_mov_b32 s95, 0")
    e(f"s_mov_b32 s72, {FL}")
    e("s_and_b32 s73, s18, 3")
    e(f"v_and_b32 v{VC}, 3, v1")
    e(f"v_add_u32 v{VC}, {CTL - 64}, v{VC}")
    e(f"v_mov_b32 v{VB_}, 0x7fff0000")
    e(f"s_add_u32 s44, s73, {CTL - 64}")
    e(f"v_writelane_b32 v{VB_}, s44, 0")
    e("v_and_b32 v12, 31, v1")
    e("v_lshlrev_b32 v12, 2, v12")
    e("v_mov_b32 v13, 0")
    e(f"v_add_u32 v12, {CTL}, v12")
    e("ds_write_b32 v12, v13")
    e("s_lshl_b32 s74, s2, 13")
    e(f"s_add_u32 s74, s74, {AUGP}")
    e(f"s_mul_i32 s75, s20, {WTO_S}")
    e(f"s_add_u32 s75, s75, {WTO}")
    e(f"s_mul_i32 s76, s17, {WT1_S}")
    e(f"s_add_u32 s76, s76, {WT1}")
    e(f"s_mul_i32 s77, s20, {WT2_S}")
    e(f"s_add_u32 s77, s77, {WT2}")
    e("s_getreg_b32 s79, hwreg(HW_REG_XCC_ID)")
    e("s_and_b32 s79, s79, 7")
    e("v_mov_b32 v6, 0")
    e(f"s_mov_b32 s44, {FL + F_EP}")
    e("s_waitcnt lgkmcnt(0)")
    srd(top, 4, 62, WS_END if not PROF else 0x10000000)
    e("buffer_load_dword v255, v6, s[4:7], s44 offen sc1")
    srd(top, 8, 60, S_*D_*2)
    srd(top, 12, 38, D_*2)
    if OPT.get("tlb", 1):
        e("s_cmp_lg_u32 s18, 7")
        e("s_cbranch_scc1 L_notlb")
        e("v_lshlrev_b32 v6, 19, v1")
        e("buffer_load_dword v8, v6, s[4:7], 0 offen")
        e("buffer_load_dword v9, v6, s[8:11], 0 offen")
        e("buffer_load_dword v10, v6, s[12:15], 0 offen")
        for n, (lo, nb) in enumerate(((28, D_*D_*2), (32, D_*F_*2), (36, D_*F_*2), (34, F_*2), (26, D_*3*D_*2))):
            srd(top, 40, lo, nb)
            e(f"buffer_load_dword v{11+n}, v6, s[40:43], 0 offen")
        top.label("L_notlb")
    e("s_barrier")
    stamp(top, 0)
    e("v_lshrrev_b32 v5, 5, v1")
    e("v_lshrrev_b32 v24, 4, v1")
    e("v_and_b32 v25, 3, v1")
    e("v_lshl_add_u32 v24, v24, 2, v25")
    e("v_bfe_u32 v25, v1, 2, 2")
    e("v_mov_b32 v40, 0x3f803f80")
    e("s_lshl_b32 s70, s73, 3")
    e("s_add_u32 s70, s70, s3")
    e("s_lshl_b32 s70, s70, 5")
    e("s_add_u32 s70, s70, s99")
    e("s_cmp_ge_u32 s18, 4")
    e("s_cbranch_scc1 L_hw_start")
    e("s_setprio 1")
    srd(top, 40, 24, S_*D_*2)
    e("s_lshl_b32 s64, s16, 4")
    e("s_add_u32 s64, s64, s17")
    e("s_mul_i32 s66, s64, 10240")
    e("s_mul_i32 s65, s18, 320")
    e("s_add_u32 s66, s66, s65")
    e("v_and_b32 v6, 7, v1")
    e("v_lshrrev_b32 v20, 3, v1")
    e("v_mul_u32_u24 v21, 1280, v6")
    e("v_lshl_add_u32 v21, v20, 4, v21")
    for q in range(4): e(f"v_mov_b32 v{16+q}, 0")
    e("buffer_load_dwordx4 v[8:11], v21, s[40:43], s66 offen")
    e("buffer_load_dwordx4 v[12:15], v21, s[40:43], s66 offen offset:128")
    e("s_mov_b32 exec_hi, 0")
    e("buffer_load_dwordx4 v[16:19], v21, s[40:43], s66 offen offset:256")
    e("s_mov_b32 exec_hi, -1")
    job_lanes(top)
    e("s_cmp_ge_u32 s70, 320")
    e("s_cbranch_scc1 L_job_o")
    e("s_and_b32 s58, s70, 15")
    e("s_lshr_b32 s59, s70, 4")
    e("s_mov_b32 s54, 3072")
    e(f"s_mul_i32 s56, s59, {32*3072}")
    e("s_mul_i32 s60, s58, 192")
    e("s_add_u32 s56, s56, s60")
    e(f"s_mul_i32 s55, s58, {WT1_S}")
    e("s_mul_i32 s60, s59, 6144")
    e("s_add_u32 s55, s55, s60")
    e(f"s_add_u32 s55, s55, {WT1}")
    e("s_mov_b32 s57, 12")
    e("s_mul_i32 s62, s58, 160")
    e("s_add_u32 s62, s62, s59")
    e("s_lshl_b32 s62, s62, 7")
    e(f"s_add_u32 s62, s62, {CSP + 16*40*512}")
    srd(top, 44, 32, D_*F_*2)
    e("v_add_u32 v34, 4096, v47")
    e("v_mov_b32 v33, v7")
    e("s_branch L_job_go")
    top.label("L_job_o")
    e("s_cmp_ge_u32 s70, 480")
    e("s_cbranch_scc1 L_job_2")
    e("s_sub_u32 s59, s70, 320")
    e("s_mov_b32 s52, 10")
    e(f"s_mov_b32 s60, {WTO_S}")
    e(f"s_mov_b32 s61, {WTO}")
    srd(top, 44, 28, D_*D_*2)
    e("s_branch L_job_g2")
    top.label("L_job_2")
    e("s_sub_u32 s59, s70, 480")
    e("s_mov_b32 s52, 24")
    e(f"s_mov_b32 s60, {WT2_S}")
    e(f"s_mov_b32 s61, {WT2}")
    srd(top, 44, 36, F_*D_*2)
    top.label("L_job_g2")
    e("s_and_b32 s58, s59, 7")
    e("s_lshr_b32 s59, s59, 3")
    e("s_mov_b32 s54, 1280")
    e(f"s_mul_i32 s56, s59, {32*1280}")
    e("s_mul_i32 s55, s58, 160")
    e("s_add_u32 s56, s56, s55")
    e("s_mul_i32 s55, s58, s60")
    e("s_add_u32 s55, s55, s61")
    e("s_cmp_ge_u32 s59, s52")
    e("s_cselect_b32 s60, s52, 0")
    e("s_cselect_b32 s61, 5120, 0")
    e("s_sub_u32 s59, s59, s60")
    e("s_mul_i32 s60, s59, 10240")
    e("s_add_u32 s55, s55, s60")
    e("s_add_u32 s55, s55, s61")
    e("s_mov_b32 s57, 10")
    e("v_add_u32 v34, 4096, v47")
    e("v_mov_b32 v35, 0x7ffffff0")
    e("v_cmp_eq_u32 vcc, 0, v5")
    e("v_and_b32 v33, 3, v1")
    e("v_lshlrev_b32 v33, 3, v33")
    e("v_cndmask_b32 v34, v35, v34, vcc")
    e("v_lshl_add_u32 v33, v25, 6, v33")
    e("v_lshl_add_u32 v33, v26, 11, v33")
    top.label("L_job_go")
    e("v_mul_lo_u32 v31, v25, s54")
    e("v_lshl_add_u32 v31, v24, 4, v31")
    e("v_cmp_gt_u32 vcc, s57, v24")
    e("v_mov_b32 v35, 0x7ffffff0")
    e("s_lshl_b32 s57, s54, 2")
    e("v_cndmask_b32 v31, v35, v31, vcc")
    e("s_lshl_b32 s58, s18, 13")
    e(f"s_add_u32 s58, s58, {STG}")
    def job_dma():
        e("s_cmp_ge_u32 s70, 864")
        e("s_cbranch_scc1 L_job_nodma")
        e("s_mov_b32 exec_hi, 0xffff")
        for t in range(8):
            e(f"s_add_u32 m0, s58, {1024*t}")
            e("s_nop 0")
            e("buffer_load_dwordx4 v31, s[44:47], s56 offen lds")
            e("s_add_u32 s56, s56, s57")
        e("s_mov_b32 exec_hi, -1")
        e("s_waitcnt vmcnt(8)")
        e("s_branch L_job_dmad")
        top.label("L_job_nodma")
        e("s_waitcnt vmcnt(0)")
        top.label("L_job_dmad")
    e("v_add_u32 v7, s58, v7")
    e("v_add_u32 v48, s58, v33")
    e("s_lshr_b32 s65, s64, 2")
    e("s_and_b32 s69, s64, 3")
    e("s_mul_i32 s66, s65, 40960")
    e("s_mul_i32 s67, s18, 10240")
    e("s_add_u32 s66, s66, s67")
    e("s_lshl_b32 s67, s69, 7")
    e("s_add_u32 s66, s66, s67")
    e("s_add_u32 s63, s66, 4096")
    e("s_add_u32 s61, s66, 8192")
    e("v_lshlrev_b32 v22, 4, v6")
    e("v_lshl_add_u32 v22, v20, 9, v22")
    e("s_lshl_b32 s68, s65, 11")
    e("s_add_u32 s67, s67, s68")
    e("s_lshl_b32 s68, s18, 9")
    e("s_add_u32 s67, s67, s68")
    e(f"s_add_u32 s67, s67, {L_STA}")
    e("v_lshlrev_b32 v23, 4, v6")
    e("v_lshl_add_u32 v23, v20, 3, v23")
    e("s_lshl_b32 s68, s64, 2")
    e("s_add_u32 s68, s68, s18")
    e("s_lshl_b32 s68, s68, 7")
    e(f"s_add_u32 s68, s68, {FL + F_X0}")
    for q in range(2): e(f"v_mov_b32 v{44+q}, 0")
    LATE = OPT.get("late", 0)
    if LATE == 0:
        if OPT.get("jdelay"): e(f"s_sleep {OPT['jdelay']}")
        job_dma()
    else:
        e("s_waitcnt vmcnt(0)")
    stamp(top, 46)
    e("buffer_store_dwordx4 v[8:11], v22, s[4:7], s66 offen sc1")
    e("buffer_store_dwordx4 v[12:15], v22, s[4:7], s63 offen sc1")
    e("s_mov_b32 exec_hi, 0")
    e("buffer_store_dwordx4 v[16:19], v22, s[4:7], s61 offen sc1")
    e("s_mov_b32 exec_hi, -1")
    for r in range(8, 20):
        e(f"v_dot2_f32_bf16 v44, v{r}, v40, v44")
        e(f"v_dot2_f32_bf16 v45, v{r}, v{r}, v45")
    epoch(top, "v255")
    for sw in ("v_permlane32_swap_b32", "v_permlane16_swap_b32"):
        e("v_mov_b32 v42, v44")
        e("v_mov_b32 v43, v45")
        e("s_nop 1")
        e(f"{sw} v44, v42")
        e(f"{sw} v45, v43")
        e("s_nop 1")
        e("v_add_f32 v44, v44, v42")
        e("v_add_f32 v45, v45, v43")
    e("s_mov_b64 exec, 0xffff")
    e("buffer_store_dwordx2 v[44:45], v23, s[4:7], s67 offen sc1")
    e("s_mov_b64 exec, -1")
    if LATE == 1: job_dma()
    else: e("s_waitcnt vmcnt(0)")
    e("v_mov_b32 v42, 0")
    e("v_mov_b32 v41, s86")
    e("s_mov_b64 exec, 1")
    e("buffer_store_dword v41, v42, s[4:7], s68 offen sc1")
    e("s_mov_b64 exec, -1")
    stamp(top, 47)
    e("s_cmp_ge_u32 s70, 864")
    e("s_cbranch_scc1 L_pro_done")
    e("s_waitcnt vmcnt(1)")
    stamp(top, 48)
    e("v_mov_b32 v15, v34")
    for sub in range(2):
        for cb in range(3):
            for rho in range(2):
                d = 16 + 12*sub + 4*cb + 2*rho
                e(f"ds_read_b64_tr_b16 v[{d}:{d+1}], v{7 if cb < 2 else 48} offset:{4096*sub + rho*1024 + cb*256}")
    e("s_waitcnt lgkmcnt(0)")
    colsum(top, [[16 + 4*cb, 28 + 4*cb] for cb in range(3)], None)
    if OPT.get("jpro"):
        post(top, C_PG - CTL, 1)
        spin(top, C_PQ - CTL, 1, sleep=1)
        for hs in range(2):
            for p in range(3):
                d = 16 + 12*hs + 4*p
                if p < 2: e(f"buffer_store_dwordx4 v[{d}:{d+3}], v47, s[4:7], s55 offen offset:{2048*p + 512*hs} sc1")
                else: e(f"buffer_store_dwordx4 v[{d}:{d+3}], v15, s[4:7], s55 offen offset:{512*hs} sc1")
        e("s_cmp_ge_u32 s70, 320")
        e("s_cbranch_scc1 L_pro_done")
        e("buffer_store_dword v12, v14, s[4:7], s62 offen sc1")
        e("s_add_u32 s62, s62, 10240")
        e("buffer_store_dword v13, v14, s[4:7], s62 offen sc1")
    top.label("L_pro_done")
    post(top, C_PG - CTL, 1)
    e("v_lshrrev_b32 v0, 4, v1")
    e("v_lshlrev_b32 v0, 9, v0")
    e("v_and_b32 v48, 15, v1")
    e("v_lshl_add_u32 v0, v48, 4, v0")
    e("s_mov_b32 s101, s70")
    e("s_lshl_b32 s100, s70, 7")
    e(f"s_add_u32 s100, s100, {FL + F_J}")
    stamp(top, 49)

    def next_layer(e):
        e(f"s_add_u32 s21, s21, {LS}")
        e("s_add_u32 s23, s23, 1")
        e("s_add_u32 s95, s95, 16")
        e(f"v_add_u32 v{VC}, 64, v{VC}")
        e(f"v_add_u32 v{VB_}, 64, v{VB_}")
        e("s_add_u32 s85, s85, 1")
        e("s_add_u32 s86, s86, 2")
        e("s_add_u32 s87, s87, 2")

    e = c.e
    e("s_branch L_cw_l0")
    c.label("L_cw_layer")
    c.label("L_cw_l0")
    QSH = qkv3(c, cold)
    attention(c, cold, QSH)
    gemm2(c, cold, "o", 10, wo_lds, 0, L_O, 40960, F_O, False, "s87", False,
          lambda cn: LO + cn, lambda cn: CO + cn, COX)
    r = gemm1_main(c, cold, "1", "s87", None, lambda cn: L1 + cn, lambda cn: C1 + cn)
    WF, ACC, RSD = r["WF"], r["ACC"], r["RSD"]
    stamp(c, 10)
    e(f"s_mul_i32 s28, s24, {192*512}")
    e("s_mul_i32 s29, s17, 6144")
    e("s_add_u32 s28, s28, s29")
    e(f"s_add_u32 s28, s28, {L_H}")
    e("s_add_u32 s29, s28, 4096")
    e("s_lshl_b32 s30, s24, 8")
    e("s_lshl_b32 s31, s17, 2")
    e("s_add_u32 s30, s30, s31")
    e(f"s_add_u32 s30, s30, {FL + F_H}")
    e("s_nop 1")
    def m1ep(kk, sc):
        for P in range(3):
            for m in range(2):
                o = WF + 8*P + 4*m
                scale_pack(kk, ACC, P, m, RSD, o, True)
                so, off = ("s28", 2048*P + 256*m) if P < 2 else ("s29", 256*m)
                kk.e(f"buffer_store_dwordx4 v[{o}:{o+3}], v0, s[4:7], {so} offen offset:{off}{sc}")
    if OPT.get("hsc1"):
        e("s_xor_b32 s82, s23, 1")
        e("s_or_b32 s82, s82, s22")
        dual(c, cold, m1ep, "s82")
    else:
        dual(c, cold, m1ep)
    e("s_mov_b32 s80, s30")
    e("s_mov_b32 s81, s85")
    gemm2(c, cold, "2", 24, m2_lds, X2B, L_H, 192*512, F_H, True, "s98",
          True, lambda cn: L2 + cn, lambda cn: C2 + cn, C2X)
    stamp(c, 14)
    next_layer(e)
    e("s_branch L_cw_layer")

    e = h.e
    QR, W1R = 8, 160
    NW1R = OPT.get("r1", 7); NW2R = OPT.get("r2", 0)
    W2R = W1R + 12 * NW1R
    assert W2R + 20 * NW2R <= 248
    TR = 168
    h.label("L_hw_start")
    e("s_cmp_ge_u32 s70, 640")
    e("s_cbranch_scc1 L_hw_nojob")
    srd(h, 40, 26, D_*3*D_*2)
    colunit(h, "v24", "v26", "v27")
    e("v_mul_u32_u24 v31, 3840, v25")
    e("v_lshl_add_u32 v31, v26, 4, v31")
    e("s_and_b32 s58, s70, 15")
    e("s_lshr_b32 s59, s70, 4")
    e(f"s_mul_i32 s56, s59, {16*3840}")
    e("s_mul_i32 s60, s58, 80")
    e("s_add_u32 s56, s56, s60")
    e("s_lshl_b32 s61, s73, 12")
    e(f"s_add_u32 s61, s61, {STG - 16384}")
    for t in range(4):
        e(f"s_add_u32 m0, s61, {1024*t}")
        e("s_nop 0")
        e("buffer_load_dwordx4 v31, s[40:43], s56 offen lds")
        e(f"s_add_u32 s56, s56, {4*3840}")
    e(f"s_mul_i32 s55, s58, {WTQ_S}")
    e(f"s_add_u32 s55, s55, {WTQ}")
    e("s_lshr_b32 s57, s59, 1")
    e("s_and_b32 s60, s59, 1")
    e("s_mul_i32 s63, s60, 384")
    e("s_mul_i32 s53, s57, 1536")
    e("s_add_u32 s63, s63, s53")
    e("s_add_u32 s63, s63, s55")
    e(f"s_add_u32 s63, s63, {QR2}")
    e("s_lshl_b32 s60, s60, 9")
    e("s_add_u32 s55, s55, s60")
    e("s_lshl_b32 s53, s57, 11")
    e("s_add_u32 s53, s53, s55")
    e(f"s_add_u32 s53, s53, {QR3}")
    e("s_lshl_b32 s57, s57, 12")
    e("s_add_u32 s55, s55, s57")
    job_lanes(h)
    e("v_add_u32 v7, s61, v7")
    e("v_subrev_u32 v34, 4, v27")
    e("v_cmp_gt_u32 vcc, 12, v27")
    e("v_mul_u32_u24 v35, 768, v5")
    e("v_mul_u32_u24 v36, 192, v26")
    e("v_cndmask_b32 v34, v34, v27, vcc")
    e("v_lshlrev_b32 v34, 4, v34")
    e("v_add3_u32 v34, v34, v35, v36")
    e("s_waitcnt vmcnt(0)")
    stamp(h, 48)
    for cb in range(4):
        for rho in range(2):
            e(f"ds_read_b64_tr_b16 v[{48+4*cb+2*rho}:{49+4*cb+2*rho}], v7 offset:{rho*1024 + cb*256}")
    for cb in range(4):
        e(f"s_waitcnt lgkmcnt({6-2*cb})")
        d = 48 + 4*cb
        if cb < 2: e(f"buffer_store_dwordx4 v[{d}:{d+3}], v47, s[4:7], s55 offen offset:{2048*cb} sc1")
        elif cb == 2: e(f"buffer_store_dwordx4 v[{d}:{d+3}], v34, s[4:7], s63 offen sc1")
        else: e(f"buffer_store_dwordx4 v[{d}:{d+3}], v47, s[4:7], s53 offen sc1")
    e("s_mul_i32 s62, s58, 160")
    e("s_add_u32 s62, s62, s59")
    e("s_lshl_b32 s62, s62, 7")
    e(f"s_add_u32 s62, s62, {CSP}")
    colsum(h, [[48 + 4*cb] for cb in range(4)], "s62")
    epoch(h, "v255")
    e("s_lshl_b32 s56, s58, 6")
    e("s_add_u32 s56, s56, s59")
    e("s_lshl_b32 s56, s56, 7")
    e(f"s_add_u32 s56, s56, {FL + F_Q}")
    stamp(h, 46)
    publish(h, "s56", 42, " sc1", "s85")
    stamp(h, 47)
    h.label("L_hw_nojob")
    e("s_mov_b32 s64, s34")
    e("s_mov_b32 s65, s35")
    e("s_mov_b32 s66, 3072")
    e("s_mov_b32 s67, 0x00020000")
    e("s_lshl_b32 s71, s73, 10")
    e("s_waitcnt vmcnt(0)")
    post(h, C_PQ - CTL, 1)
    epoch(h, "v255")
    stamp(h, 49)
    def q_round_need(cn): return ((4*cn + 4) * 3840 + 4095) // 4096 - 1
    def q_write(r):
        b, off = divmod(r * 4096, 0xf000)
        if r == 37:
            e("s_cmp_ge_u32 s73, 2")
            lab = h.newlabel("L_q37")
            e(f"s_cbranch_scc1 {lab}")
        e(f"ds_write_b128 v{5+b}, v[{QR+4*r}:{QR+4*r+3}] offset:{off}")
        if r == 37: h.label(lab)
        for cn in range(10):
            if q_round_need(cn) == r: post(h, C_LAND - CTL, LQ + cn)
    def q_waddr():
        e("v_add_u32 v5, s71, v2")
        e("v_add_u32 v6, 0xf000, v5")
        e("v_add_u32 v7, 0x1e000, v5")
    known = {"c": -10**9}
    def need_cons(T, flush=None):
        if T is None or T <= known["c"]: return
        known["c"] = T
        if flush is None:
            spin(h, C_CONS - CTL, T, sleep=1)
            return
        lf = h.newlabel("L_cw"); lb = lf + "_b"
        e(cread(VT, C_CONS - CTL))
        e("s_waitcnt lgkmcnt(0)")
        chk(h, VT, T, lf)
        h.label(lb)
        cold.label(lf)
        cold.e("s_waitcnt vmcnt(0)")
        post(cold, C_LAND - CTL, flush)
        spin(cold, C_CONS - CTL, T, sleep=1)
        cold.e(f"s_branch {lb}")
    def touch(src_s, off):
        e(f"s_add_u32 s24, {src_s}, {off}")
        h.vmem("buffer_load_dword v0, v4, s[4:7], s24 offen sc1", "t")
    def gpoll(loads, L):
        e("s_mov_b32 s90, 0")
        h.label(L)
        for n, (va, so) in enumerate(loads):
            e(f"buffer_load_dword v{252+n}, {va}, s[4:7], {so} offen sc1")
        e("s_add_u32 s90, s90, 1")
        e(f"s_cmp_gt_u32 s90, {SPIN_MAX}")
        e(f"s_cbranch_scc1 {L}_out")
        e("s_waitcnt vmcnt(0)")
        e("v_subrev_u32 v0, s85, v252")
        for n in range(1, len(loads)):
            e(f"v_subrev_u32 v{TR}, s85, v{252+n}")
            e(f"v_max_u32 v0, v0, v{TR}")
        e("v_cmp_lt_u32 vcc, 15, v0")
        e(f"s_cbranch_vccz {L}_out")
        e(f"s_sleep {OPT.get('gsleep', 2)}")
        e(f"s_branch {L}")
        h.label(L + "_out")
    e("s_lshl_b32 s26, s16, 2")
    e("s_cmp_eq_u32 s73, 0")
    e("s_cbranch_scc0 L_hw_r1")
    e(f"v_min_u32 v{TR+1}, 39, v1")
    e(f"v_lshlrev_b32 v{TR+1}, 7, v{TR+1}")
    e("s_lshl_b32 s24, s17, 13")
    e(f"s_add_u32 s24, s24, {FL + F_Q}")
    gpoll([(f"v{TR+1}", "s24")], "L_hw_gq")
    spin(h, C_PQ - CTL, 1, sleep=1)
    e("v_mov_b32 v252, 1")
    e(f"ds_write_b8 v{VC}, v252 offset:{64+C_GO-CTL}")
    e("s_branch L_hw_rj")
    h.label("L_hw_r1")
    e("s_cmp_eq_u32 s73, 1")
    e("s_cbranch_scc0 L_hw_r2")
    touch("s74", 0)
    touch("s74", 4096)
    e("s_lshl_b32 s25, s3, 11")
    e("s_mov_b32 exec_hi, 0")
    touch("s25", FL)
    e("s_mov_b32 exec_hi, -1")
    e("s_branch L_hw_rj")
    h.label("L_hw_r2")
    e("s_cmp_eq_u32 s73, 3")
    e("s_cbranch_scc0 L_hw_nohi")
    e("s_lshl_b32 s24, s3, 5")
    e("s_add_u32 s24, s24, s99")
    e("s_lshl_b32 s24, s24, 7")
    e(f"s_add_u32 s24, s24, {FL + F_HI}")
    e("s_add_u32 s27, s85, s79")
    publish(h, "s24", 252, " sc1", "s27")
    h.label("L_hw_nohi")
    if OPT.get("ttime", 1) == 1: spin(h, C_PQ - CTL, 1, sleep=2)
    if OPT.get("ttime", 1) == 2: e("s_branch L_hw_rj")
    e("s_sub_u32 s25, s73, 2")
    e("s_lshl_b32 s25, s25, 1")
    e("s_add_u32 s26, s26, s25")
    for n in range(2):
        e(f"s_mul_i32 s27, s26, {192*512}")
        e("s_mul_i32 s25, s17, 6144")
        e("s_add_u32 s27, s27, s25")
        touch("s27", L_H)
        e("s_mov_b32 exec_hi, 0")
        touch("s27", L_H + 4096)
        e("s_mul_i32 s27, s26, 40960")
        e("s_mul_i32 s25, s17, 2560")
        e("s_add_u32 s27, s27, s25")
        e("s_mov_b32 exec_hi, 0xff")
        touch("s27", L_O)
        e("s_mov_b32 exec_hi, -1")
        e("s_add_u32 s26, s26, 1")
    h.label("L_hw_rj")
    h.reset_vm()
    q_waddr()
    e(f"s_mul_i32 s26, s17, {WTQ_S}")
    e(f"s_add_u32 s26, s26, {WTQ}")
    e("s_add_u32 s26, s26, s71")
    spin(h, C_GO - CTL, 1, sleep=1)
    stamp(h, 50)
    def cs_loads(base, n, dst, tag):
        e("v_and_b32 v172, 31, v1")
        e("v_lshlrev_b32 v172, 2, v172")
        e("v_lshrrev_b32 v174, 5, v1")
        e("v_lshl_add_u32 v172, v174, 7, v172")
        e(f"s_mul_i32 s25, s17, {4*5120}")
        e("s_mul_i32 s27, s73, 5120")
        e("s_add_u32 s25, s25, s27")
        e(f"s_add_u32 s25, s25, {base}")
        for i in range(n):
            if i == 16: e("s_add_u32 s25, s25, 4096")
            h.vmem(f"buffer_load_dword v{dst+i}, v172, s[4:7], s25 offen offset:{256*(i%16)} sc1", tag)
    def aug_make(b, n, withb1):
        e("s_mov_b32 s60, -1")
        e("s_mov_b32 s61, 0")
        for i in range(1, n): e(f"v_add_f32 v{b}, v{b}, v{b+i}")
        e(f"v_mov_b32 v{b+1}, v{b}")
        e("s_nop 1")
        e(f"v_permlane32_swap_b32 v{b}, v{b+1}")
        e("s_nop 1")
        e(f"v_add_f32 v{b}, v{b}, v{b+1}")
        e(f"v_cvt_pk_bf16_f32 v{b+1}, v{b}, v{b}")
        e(f"v_and_b32 v{b+2}, 0xffff0000, v{b+1}")
        e(f"v_sub_f32 v{b+2}, v{b}, v{b+2}")
        e(f"v_cvt_pk_bf16_f32 v{b+4}, v{b}, v{b+2}")
        e(f"v_and_b32 v{b+5}, 0xffff, v{b+1}")
        if withb1:
            e(f"v_lshl_or_b32 v{b+5}, v175, 16, v{b+5}")
            e(f"v_cndmask_b32 v{b+6}, 0, v175, s[60:61]")
        else:
            e(f"v_mov_b32 v{b+6}, 0")
        e(f"v_mov_b32 v{b+7}, 0")
        e(f"v_cndmask_b32 v{b+4}, 0, v{b+4}, s[60:61]")
        e(f"v_cndmask_b32 v{b+5}, 0, v{b+5}, s[60:61]")
    def late_setup():
        e("s_cmp_lg_u32 s23, 0")
        e("s_cbranch_scc1 L_hw_nolate")
        e("s_cmp_ge_u32 s73, 2")
        e("s_cselect_b32 s25, 47, 19")
        e(f"v_min_u32 v{TR+1}, s25, v1")
        e("s_cmp_eq_u32 s73, 1")
        e("s_cselect_b32 s25, 11, 10")
        e(f"v_lshlrev_b32 v{TR+1}, s25, v{TR+1}")
        e("s_add_u32 s24, s20, 480")
        e("s_cselect_b32 s24, s17, s24") if False else None
        e("s_cmp_eq_u32 s73, 1")
        e("s_cselect_b32 s24, s17, s24")
        e("s_add_u32 s25, s20, 320")
        e("s_cmp_eq_u32 s73, 0")
        e("s_cselect_b32 s24, s25, s24")
        e("s_lshl_b32 s24, s24, 7")
        e(f"s_add_u32 s24, s24, {FL + F_J}")
        e(f"v_and_b32 v{TR+2}, 31, v1")
        e(f"v_lshlrev_b32 v{TR+2}, 7, v{TR+2}")
        e("s_lshl_b32 s25, s3, 12")
        e(f"s_add_u32 s25, s25, {FL + F_HI}")
        e("s_cmp_eq_u32 s73, 3")
        e("s_cselect_b32 s24, s25, s24")
        e("s_cselect_b64 vcc, -1, 0")
        e(f"v_cndmask_b32 v{TR+1}, v{TR+1}, v{TR+2}, vcc")
        gpoll([(f"v{TR+1}", "s24")], "L_hw_gg")
        e("s_cmp_lg_u32 s73, 3")
        e("s_cbranch_scc1 L_hw_nopur")
        e("s_add_u32 s27, s85, s79")
        e("v_cmp_ne_u32 vcc, s27, v252")
        e("s_or_b64 vcc, vcc, vcc")
        e("s_cselect_b32 s22, 1, 0")
        if FORCE_SLOW: e("s_mov_b32 s22, 1")
        e("v_mov_b32 v170, s22")
        e(f"ds_write_b8 v{VC}, v170 offset:{64+C_MODE-CTL}")
        e(f"ds_write_b8 v{VC}, v170 offset:{128+C_MODE-CTL}")
        h.label("L_hw_nopur")
        post(h, C_PQ - CTL, 2)
        spin(h, C_PQ - CTL, 2, sleep=1)
        cs_loads(CSP + 16*40*512, 10, 220, "cs")
        e("v_bfe_u32 v173, v1, 2, 2")
        e("s_lshl_b32 s25, s73, 2")
        e("v_add_u32 v173, s25, v173")
        e("v_bfe_u32 v174, v1, 4, 1")
        e("v_lshl_add_u32 v173, v173, 1, v174")
        e("v_and_b32 v174, 3, v1")
        e("v_lshl_add_u32 v173, v173, 2, v174")
        e("v_lshlrev_b32 v173, 1, v173")
        e("s_mul_i32 s27, s17, 192")
        e("buffer_load_ushort v175, v173, s[64:67], s27 offen")
        h.label("L_hw_nolate")
    def late_finish():
        aug_make(220, 10, True)
        e("s_lshl_b32 s27, s73, 9")
        e("v_add_u32 v193, s27, v2")
        e("s_add_u32 s27, s74, 4096")
        e("s_mov_b32 exec_hi, 0")
        e("buffer_store_dwordx4 v[224:227], v193, s[4:7], s27 offen")
        e("s_mov_b32 exec_hi, -1")
    LAG = OPT.get("qlag", 8)
    if OPT.get("rot", 0):
        e(f"s_mul_i32 s28, s83, {10*QSTEP}")
        e("s_sub_u32 s29, s26, s28")
        e("s_add_u32 s26, s26, s28")
        e("s_cmp_eq_u32 s73, 3")
        e("s_cselect_b32 s28, s29, s26")
    for r in range(38 + LAG):
        if r < 38:
            sb = "s26" if (r < 18 or not OPT.get("rot", 0)) else ("s28" if r == 18 else "s29")
            e(f"s_add_u32 s30, {sb}, {4096*r}")
            h.vmem(f"buffer_load_dwordx4 v[{QR+4*r}:{QR+4*r+3}], v2, s[4:7], s30 offen sc1", ("q", r))
        if r == LAG: cs_loads(CSP, 20, 200, "cs")
        if r >= LAG:
            h.wait(vm=("q", r - LAG))
            if r - LAG == 18:
                spin(h, C_PG - CTL, 1, sleep=1)
                e("s_lshl_b32 s27, s73, 9")
                e("v_add_u32 v192, s27, v2")
                e(f"v_add_u32 v193, {QAUG}, v192")
                aug_make(200, 20, False)
                e("s_mov_b32 exec_hi, 0")
                e("buffer_store_dwordx4 v[204:207], v192, s[4:7], s74 offen")
                e("ds_write_b128 v193, v[204:207]")
                e("s_mov_b32 exec_hi, -1")
            q_write(r - LAG)
            if OPT.get("early") == 2 and r - LAG == OPT.get("lsr", 24): late_setup()
    stamp(h, 1)
    if OPT.get("early"):
        if OPT["early"] == 1: late_setup()
        e("s_waitcnt vmcnt(0)")
        late_finish()
    h.reset_vm()
    e(f"s_mul_i32 s26, s73, 3072")
    e("s_add_u32 s70, s76, s26")
    e(f"s_add_u32 s70, s70, {(10-NW1R)*4*3072}")
    def w1r_load(c_):
        e(f"s_add_u32 s26, s70, {c_*4*3072}")
        for u in range(3):
            r = W1R + 12*c_ + 4*u
            h.vmem(f"buffer_load_dwordx4 v[{r}:{r+3}], v2, s[4:7], s26 offen offset:{1024*u} sc1", "w1r")
    def w2r_load(c_):
        e("s_mul_i32 s26, s73, 5120")
        e("s_add_u32 s26, s26, s77")
        e(f"s_add_u32 s26, s26, {(12-NW2R+c_)*20480}")
        for u in range(5):
            r = W2R + 20*c_ + 4*u
            if u == 4: e("s_add_u32 s26, s26, 4096")
            h.vmem(f"buffer_load_dwordx4 v[{r}:{r+3}], v2, s[4:7], s26 offen offset:{1024*(u%4)} sc1", "w1r")
    rl = [lambda c_=c_: w1r_load(c_) for c_ in range(NW1R)] + [lambda c_=c_: w2r_load(c_) for c_ in range(NW2R)]
    N1 = min(OPT.get("n1", 0), len(rl))
    for f in rl[:N1]: f()
    e("s_branch L_hw_common")
    h.label("L_hw_layer1")
    known["c"] = -10**9
    stamp(h, 0)
    q_waddr()
    e("s_lshl_b32 s25, s73, 9")
    e(f"s_add_u32 m0, s25, {QAUG}")
    e("s_add_u32 s25, s25, s74")
    e("s_mov_b32 exec_hi, 0")
    e("buffer_load_dwordx4 v2, s[4:7], s25 offen sc1 lds")
    e("s_mov_b32 exec_hi, -1")
    spin(h, C_CONS - CTL + PREV, C2 + 11, sleep=1)
    e("s_waitcnt vmcnt(0)")
    for r in range(38):
        if (r + 1) * 4096 > X2B >= r * 4096: spin(h, C_CONS - CTL + PREV, C2X, sleep=1)
        q_write(r)
        if r % 8 == 7: e("s_waitcnt lgkmcnt(4)")
    stamp(h, 1)
    if OPT.get("touch", 1):
        h.reset_vm()
        e("s_mul_i32 s25, s84, 25600")
        e("s_add_u32 s25, s25, s75")
        e("s_mul_i32 s26, s83, 12288")
        e("s_add_u32 s26, s26, s76")
        plan = [("s25", 4096*n) for n in range(6)] + [("s26", 4096*n) for n in range(3)]
        TPS = OPT.get("tps", 1)
        if TPS == 2:
            e("s_lshl_b32 s27, s84, 12")
            e("s_add_u32 s27, s27, s77")
            plan += [("s27", 16384*n) for n in range(7)]
        for n, (sr_, off) in enumerate(plan):
            lab = h.newlabel("L_tq")
            e(f"s_cmp_lg_u32 s73, {n % 4}")
            e(f"s_cbranch_scc1 {lab}")
            spin(h, C_CONS - CTL, CQ + min(4, n // 2), sleep=2)
            touch(sr_, off)
            h.label(lab)
    def stream(src, blk, chunks, nblk, ldsf, land0, consf, extra={}, DEPTH=2):
        e(f"s_mul_i32 s25, s73, {blk}")
        e(f"s_add_u32 s26, {src}, s25")
        pend = []
        for cn in chunks:
            b0 = 4 * cn
            nb = min(4, nblk - b0)
            need_cons(consf(cn), land0 + pend[-1] if pend else None)
            addrs = [ldsf(b0 + i) for i in range(nb)]
            lin = all(addrs[i] == addrs[0] + i*blk for i in range(nb))
            L = None
            if nb < 4:
                L = h.newlabel("L_nb")
                e(f"s_cmp_ge_u32 s73, {nb}")
                e(f"s_cbranch_scc1 {L}")
            if lin:
                e(f"s_add_u32 s27, s25, {addrs[0]}")
            else:
                e(f"s_mov_b32 s27, {addrs[0]}")
                for i in range(1, nb):
                    e(f"s_cmp_eq_u32 s73, {i}")
                    e(f"s_cselect_b32 s27, {addrs[i]}, s27")
            e("s_mov_b32 m0, s27")
            e(f"s_add_u32 s28, s26, {b0*blk}")
            nfull = blk // 1024
            for u in range(min(nfull, 4)):
                h.vmem(f"buffer_load_dwordx4 v2, s[4:7], s28 offen offset:{1024*u} sc1 lds", ("b", cn))
            if nfull == 5:
                e("s_add_u32 m0, s27, 4096")
                e("s_add_u32 s28, s28, 4096")
                h.vmem("buffer_load_dwordx4 v2, s[4:7], s28 offen sc1 lds", ("b", cn))
            if L: h.label(L)
            pend.append(cn)
            for tc in extra.get(cn, []): tc()
            if len(pend) >= DEPTH:
                d = pend.pop(0)
                if L: e("s_waitcnt vmcnt(0)")
                else: h.wait(vm=("b", d))
                post(h, C_LAND - CTL, land0 + d)
        return pend
    def flush(land0, pend):
        if pend:
            e("s_waitcnt vmcnt(0)")
            post(h, C_LAND - CTL, land0 + pend[-1])
        h.reset_vm()
    h.label("L_hw_common")
    known["c"] = min(known["c"], -10**9)
    if OPT.get("touch"): e("s_waitcnt vmcnt(0)")
    h.reset_vm()
    stamp(h, 2)
    if OPT.get("woearly", 0):
        need_cons(CQ + 10)
        p = stream("s75", 5120, range(OPT["woearly"]), 20, wo_lds, LO, lambda cn: None)
        flush(LO, p)
    e("s_lshl_b32 s26, s73, 1")
    e("s_lshl_b32 s27, s16, 2")
    e("s_add_u32 s27, s27, s26")
    e("s_sub_i32 s27, s27, 8")
    e(f"s_mul_i32 s30, s26, {TSK}")
    e(f"s_add_u32 s30, s30, {KB}")
    e(f"s_mul_i32 s68, s26, {TSV}")
    e(f"v_mul_u32_u24 v5, {TSK}, v1")
    e("v_add_u32 v5, s30, v5")
    e(f"v_mul_u32_u24 v0, {TSV}, v1")
    e("v_add_u32 v0, s68, v0")
    e("s_cmp_lt_i32 s27, 0")
    e("s_cselect_b32 s24, 0xf149, 0")
    e("v_mov_b32 v252, s24")
    e("v_mov_b32 v253, 0")
    e("v_mov_b32 v254, s24")
    e("v_mov_b32 v255, 0")
    e("v_mov_b32 v6, 0x3f803f80")
    e("v_mov_b32 v7, 0x3f803f80")
    need_cons(CQ + 5)
    e("s_mov_b64 exec, 3")
    e("ds_write_b128 v5, v[252:255] offset:2560")
    e("ds_write_b64 v0, v[6:7] offset:2560")
    e("ds_write_b64 v0, v[6:7] offset:2816")
    e("s_mov_b64 exec, -1")
    lneg = "L_hw_neg"; lhd = "L_hw_halo_done"
    e("s_cmp_lt_i32 s27, 0")
    e(f"s_cbranch_scc1 {lneg}")
    e("s_lshl_b32 s28, s27, 4")
    e("s_add_u32 s28, s28, s17")
    e("s_lshl_b32 s29, s28, 7")
    e("s_add_u32 s29, s29, s72")
    e(f"s_add_u32 s29, s29, {F_KV}")
    e("s_mul_i32 s28, s28, 5120")
    e("s_add_u32 s28, s28, s21")
    e(f"s_add_u32 s28, s28, {L_KV}")
    e("s_mov_b32 s62, s28")
    e("s_mov_b32 s63, s29")
    def kvpoll(part):
        L = f"L_hw_kvpoll{part}"
        e("v_lshlrev_b32 v5, 11, v1")
        e("s_mov_b64 exec, 3")
        e("s_mov_b32 s90, 0")
        h.label(L)
        e("buffer_load_dword v6, v5, s[4:7], s63 offen sc1")
        e("s_add_u32 s90, s90, 1")
        e(f"s_cmp_gt_u32 s90, {SPIN_MAX}")
        e(f"s_cbranch_scc1 {L}_out")
        e("s_waitcnt vmcnt(0)")
        e(f"v_subrev_u32 v6, {('s86', 's87')[part]}, v6")
        e("v_cmp_lt_u32 vcc, 15, v6")
        e(f"s_cbranch_vccnz {L}")
        h.label(L + "_out")
        e("s_mov_b64 exec, -1")
    kvpoll(0)
    stamp(h, 3)
    for n in range(2):
        e(f"s_add_u32 m0, s30, {n*TSK}")
        e(f"s_add_u32 s31, s62, {n*16*5120}")
        e("buffer_load_dwordx4 v2, s[4:7], s31 offen sc1 lds")
        e("buffer_load_dwordx4 v2, s[4:7], s31 offen offset:1024 sc1 lds")
        e("s_mov_b32 exec_hi, 0")
        e("buffer_load_dwordx4 v2, s[4:7], s31 offen offset:2048 sc1 lds")
        e("s_mov_b32 exec_hi, -1")
    for n in range(2):
        e(f"s_add_u32 m0, s68, {n*TSV}")
        e(f"s_add_u32 s31, s62, {n*16*5120 + 2560}")
        e("buffer_load_dwordx4 v2, s[4:7], s31 offen sc1 lds")
        e("s_mov_b32 exec_hi, 0")
        e("buffer_load_dwordx4 v2, s[4:7], s31 offen offset:1024 sc1 lds")
        e("s_mov_b32 exec_hi, -1")
    e("s_waitcnt vmcnt(4)")
    post(h, C_HK - CTL, 1)
    e("s_waitcnt vmcnt(0)")
    post(h, C_HV - CTL, 1)
    e("s_mov_b32 s61, 1")
    e(f"s_branch {lhd}")
    h.label(lneg)
    e("v_add_u32 v5, s30, v2")
    e("v_add_u32 v6, s68, v2")
    e("v_mov_b32 v252, 0")
    e("v_mov_b32 v254, 0")
    for n in range(2):
        for u in (0, 1024, 1536):
            e(f"ds_write_b128 v5, v[252:255] offset:{n*TSK + u}")
            e(f"ds_write_b128 v6, v[252:255] offset:{n*TSV + u}")
    post(h, C_HK - CTL, 1)
    post(h, C_HV - CTL, 2)
    e("s_mov_b32 s61, 0")
    h.label(lhd)
    spin(h, C_HV - CTL, 1, sleep=1)
    need_cons(CQ + 10)
    if OPT.get("hwquiet"): spin(h, C_RD - CTL, 2, sleep=OPT["hwquiet"])
    stamp(h, 4)
    if not OPT.get("early"): late_setup()
    h.reset_vm()
    e("s_lshl_b32 s26, s16, 2")
    e("s_add_u32 s26, s26, s73")
    e("s_mul_i32 s24, s26, 40960")
    e("s_mul_i32 s25, s17, 2560")
    e("s_add_u32 s24, s24, s25")
    e(f"s_add_u32 s24, s24, {L_O}")
    e("s_mov_b32 exec_hi, 0xff")
    e("buffer_load_dword v0, v4, s[4:7], s24 offen sc1")
    e("s_mov_b32 exec_hi, -1")
    e(f"s_mul_i32 s69, s26, {192*512}")
    e("s_mul_i32 s25, s17, 6144")
    e("s_add_u32 s69, s69, s25")
    e(f"s_add_u32 s69, s69, {L_H}")
    WE = OPT.get("woearly", 0)
    VA = OPT.get("va", 2)
    p = stream("s75", 5120, range(WE, VA), 20, wo_lds, LO, lambda cn: None, {}, 9)
    e("s_cmp_eq_u32 s61, 0")
    e("s_cbranch_scc1 L_hw_nov34")
    kvpoll(1)
    for n in range(2):
        e(f"s_add_u32 m0, s68, {n*TSV + 1536}")
        e(f"s_add_u32 s31, s62, {n*16*5120 + 4096}")
        e("buffer_load_dwordx4 v2, s[4:7], s31 offen sc1 lds")
    h.label("L_hw_nov34")
    h.reset_vm()
    p = stream("s75", 5120, range(VA, 4), 20, wo_lds, LO, lambda cn: None, {}, 9)
    e(f"s_waitcnt vmcnt({5*(4-VA)})")
    post(h, C_HV - CTL, 2)
    if not OPT.get("nofl", 1): flush(LO, p)
    stamp(h, 5)
    e("s_cmp_lg_u32 s23, 0")
    e("s_cbranch_scc1 L_hw_now1r")
    if not OPT.get("early"): late_finish()
    for f in rl[N1:]: f()
    h.label("L_hw_now1r")
    def htouch():
        if OPT.get("hsc1"):
            e("s_waitcnt vmcnt(0)")
            e("s_cmp_eq_u32 s23, 0")
            e("s_cbranch_scc1 L_hw_noht")
        touch("s69", 0)
        e("s_mov_b32 exec_hi, 0")
        touch("s69", 4096)
        e("s_mov_b32 exec_hi, -1")
        if OPT.get("hsc1"): h.label("L_hw_noht")
    if not OPT.get("hlate", 1): htouch()
    if OPT.get("w2t"):
        e("s_cmp_eq_u32 s23, 0")
        e("s_cbranch_scc1 L_hw_now2t")
        e("s_mul_i32 s25, s84, 4096")
        e("s_add_u32 s25, s25, s77")
        e("s_lshl_b32 s26, s73, 14")
        e("s_add_u32 s25, s25, s26")
        for n in range(OPT["w2t"]): touch("s25", n*65536)
        h.label("L_hw_now2t")
    h.reset_vm()
    spin(h, C_RD - CTL, 1, sleep=1)
    p = stream("s75", 5120, [4], 20, wo_lds, LO, lambda cn: None)
    p = stream("s76", 3072, range(2), 41, m1_lds, L1, lambda cn: None, {}, 9)
    h.wait(vm=("b", 4))
    post(h, C_LAND - CTL, LO + 4)
    if OPT.get("hlate", 1): htouch()
    h.wait(vm=("b", 1))
    post(h, C_LAND - CTL, L1 + 1)
    h.reset_vm()
    spin(h, C_RD - CTL, 2, sleep=1)
    need_cons(CO + OPT.get("m1c2", 0))
    p = stream("s76", 3072, [2], 41, m1_lds, L1, lambda cn: None)
    flush(L1, p)
    stamp(h, 6)
    def cons_1(cn):
        ov = [b for b in range(20) for x in range(4*cn, min(41, 4*cn + 4)) if wo_lds(b) < m1_lds(x) + 3072 and wo_lds(b) + 5120 > m1_lds(x)]
        return CO + max(ov) // 4
    p = stream("s76", 3072, range(3, 10 - NW1R), 40, m1_lds, L1, cons_1)
    flush(L1, p)
    for cn in range(10 - NW1R, 10):
        need_cons(cons_1(cn))
        addrs = [m1_lds(4*cn + i) for i in range(4)]
        e(f"s_mov_b32 s27, {addrs[0]}")
        for i in range(1, 4):
            e(f"s_cmp_eq_u32 s73, {i}")
            e(f"s_cselect_b32 s27, {addrs[i]}, s27")
        e("v_add_u32 v5, s27, v2")
        for u in range(3):
            r = W1R + 12*(cn-10+NW1R) + 4*u
            e(f"ds_write_b128 v5, v[{r}:{r+3}] offset:{1024*u}")
        post(h, C_LAND - CTL, L1 + cn)
        e("s_waitcnt lgkmcnt(4)")
    need_cons(cons_1(10))
    e("s_lshl_b32 s25, s73, 9")
    e(f"s_add_u32 m0, s25, {m1_lds(40)}")
    e("s_add_u32 s25, s25, s74")
    e("s_add_u32 s25, s25, 4096")
    e("s_mov_b32 exec_hi, 0")
    e("buffer_load_dwordx4 v2, s[4:7], s25 offen sc1 lds")
    e("s_mov_b32 exec_hi, -1")
    flush(L1, [10])
    stamp(h, 7)
    def cons_2(cn):
        need = COX
        if OPT.get("m2start") is not None: need = max(need, C1 + OPT["m2start"])
        for b in range(2*cn, 2*cn + 2):
            if b >= R2:
                need = max(need, C2 + (b - R2) // 2)
            else:
                last = _slot_free(SLOTS[b])
                if last >= 0: need = max(need, C1 + last // 4)
        return need
    t2 = {}
    for cn, ix in ((0, 8), (3, 9), (6, 10), (7, 11), (9, 12)):
        t2.setdefault(cn, []).append(lambda ix=ix: stamp(h, ix))
    p = stream("s77", 5120, range(12 - NW2R), 48, m2_lds, L2, cons_2, t2)
    flush(L2, p)
    for cn in range(12 - NW2R, 12):
        need_cons(cons_2(cn))
        addrs = [m2_lds(4*cn + i) for i in range(4)]
        e(f"s_mov_b32 s27, {addrs[0]}")
        for i in range(1, 4):
            e(f"s_cmp_eq_u32 s73, {i}")
            e(f"s_cselect_b32 s27, {addrs[i]}, s27")
        e("v_add_u32 v5, s27, v2")
        for u in range(5):
            r = W2R + 20*(cn-12+NW2R) + 4*u
            e(f"ds_write_b128 v5, v[{r}:{r+3}] offset:{1024*u}")
        post(h, C_LAND - CTL, L2 + cn)
        e("s_waitcnt lgkmcnt(6)")
    stamp(h, 13)
    next_layer(e)
    e("s_cmp_lt_u32 s23, 2")
    e("s_cbranch_scc1 L_hw_layer1")
    e("s_branch L_mega_fin")

    fin = St("fin")
    fin.label("L_mega_fin")
    fin.e("s_xor_b32 s24, s18, 4")
    fin.e("s_or_b32 s24, s2, s24")
    fin.e("s_cmp_lg_u32 s24, 0")
    fin.e("s_cbranch_scc1 L_noep")
    fin.e("s_mov_b64 exec, -1")
    fin.e("v_lshlrev_b32 v4, 7, v1")
    fin.e("s_add_u32 s25, s97, 1")
    for n in range(4):
        fin.e(f"s_mov_b32 s24, {FL + F_HI + n*8192}")
        fin.e("s_mov_b32 s90, 0")
        fin.label(f"L_fin_hi{n}")
        fin.e("buffer_load_dword v5, v4, s[4:7], s24 offen sc1")
        fin.e("s_add_u32 s90, s90, 1")
        fin.e(f"s_cmp_gt_u32 s90, {SPIN_MAX}")
        fin.e(f"s_cbranch_scc1 L_fin_hi{n}_out")
        fin.e("s_waitcnt vmcnt(0)")
        fin.e("v_subrev_u32 v5, s25, v5")
        fin.e("v_cmp_lt_u32 vcc, 15, v5")
        fin.e(f"s_cbranch_vccnz L_fin_hi{n}")
        fin.label(f"L_fin_hi{n}_out")
    fin.e("s_add_u32 s96, s96, 1")
    fin.e("v_mov_b32 v4, 0")
    fin.e("v_mov_b32 v5, s96")
    fin.e(f"s_mov_b32 s24, {FL + F_EP}")
    fin.e("s_mov_b64 exec, 1")
    fin.e("buffer_store_dword v5, v4, s[4:7], s24 offen sc1")
    fin.label("L_noep")
    if PROF:
        e = fin.e
        e("s_mov_b64 exec, -1")
        e("s_waitcnt vmcnt(0)")
        e("s_mov_b32 s95, 16")
        stamp(fin, 15)
        e("s_memrealtime s[92:93]")
        e("s_waitcnt lgkmcnt(0)")
        e("v_writelane_b32 v3, s88, 32")
        e("v_writelane_b32 v3, s92, 33")
        e("v_writelane_b32 v3, s22, 34")
        e("s_lshl_b32 s24, s2, 3")
        e("s_add_u32 s24, s24, s18")
        e("s_lshl_b32 s24, s24, 8")
        e(f"s_add_u32 s24, s24, {WS_PROF}")
        e("v_lshlrev_b32 v4, 2, v1")
        e("buffer_store_dword v3, v4, s[4:7], s24 offen")
    fin.label("L_mega_end")
    fin.e("s_endpgm")
    return top.text() + c.text() + h.text() + fin.text() + cold.text()


def main(out_path):
    ref = open(f"cdna_kernels/{NAME}.s.ref").read().split("\n")
    hdr = [l for l in ref if l.startswith(";") and "@launch" not in l and "Override launch" not in l and "grid=ceil" not in l]
    mega = gen_mega()
    kn = NAME + "_kernel"
    out = "\n".join(hdr) + "\n"
    if OPT.get("list"):
        out += f"; @launch kernel={kn} grid=(256,1,1) block=(512,1,1) lds=163840\n"
    else:
        out += f"; @launch grid=(256,1,1) block=(512,1,1) lds=163840\n"
    out += '.amdgcn_target "amdgcn-amd-amdhsa--gfx950"\n.text\n'
    out += ".p2align 8\nL_code_begin:\n"
    out += kernel_header(kn) + mega
    out += att_table()
    out += "L_code_end:\n"
    out += '.section .rodata,"a"\n'
    out += descriptor(kn, 256, 102)
    open(out_path, "w").write(out)

if __name__ == "__main__":
    for a in sys.argv[2:]:
        if a == "prof": PROF = True
        if a == "slow": FORCE_SLOW = True
        if "=" in a: OPT[a.split("=")[0]] = int(a.split("=")[1])
    main(sys.argv[1] if len(sys.argv) > 1 else f"cdna_kernels/{NAME}.s")
```
